```python
import torch

def _softmax(x, axis=-1):
    return torch.softmax(x, dim=axis)
def _gelu(x):
    return torch.nn.functional.gelu(x, approximate="tanh")
def _silu(x):
    return torch.nn.functional.silu(x)
def _sigmoid(x):
    return torch.sigmoid(x)
def _layernorm(x, axis=-1, eps=1e-5):
    m = x.mean(dim=axis, keepdim=True)
    v = x.var(dim=axis, keepdim=True, unbiased=False)
    return (x - m) / torch.sqrt(v + eps)
def _scatter_add(tgt, idx, src, axis=0):
    return tgt.clone().index_add_(axis, idx, src)
def _segment_sum(src, seg, n):
    out = torch.zeros((n,) + src.shape[1:], dtype=src.dtype)
    return out.index_add_(0, seg, src)
def _pad(x, pw):
    flat = tuple(v for pair in reversed(pw) for v in pair)
    return torch.nn.functional.pad(x, flat)

kernel_name = 'recurrent_scan__sliding_block_cached__moe_arch_mod__prompt'

def setup_inputs():

    _w = (lambda a: (lambda t: t.to(torch.bfloat16) if t.is_floating_point() else t)(torch.as_tensor(a)))
    def _A_setup():
        B, Sq, D = 1, 2048, 512
        Hq, Hkv, Sk, Dh = 32, 8, 2048, 128
        assert Hq % Hkv == 0, (Hq, Hkv)
        return {
            "x": _w((lambda *s: torch.randn(*s, dtype=torch.bfloat16) * 0.1)(B, Sq, D)),
            "k_cache": _w((lambda *s: torch.randn(*s, dtype=torch.bfloat16) * 0.8)(B, Hkv, Sk, Dh)),
            "v_cache": _w((lambda *s: torch.randn(*s, dtype=torch.bfloat16) * 3.2)(B, Hkv, Sk, Dh)),
            "wq": _w((lambda *s: torch.randn(*s, dtype=torch.bfloat16) * 0.8)(D, Hq * Dh) * (D ** -0.5)),
            "wo": _w((lambda *s: torch.randn(*s, dtype=torch.bfloat16) * 3.2)(Hq * Dh, D) * ((Hq * Dh) ** -0.5)),
        }
    _A_in = _A_setup()

    def _B_setup():
        B, S, D, F, C = 1, 2048, 512, 1792, 8
        return {
            "x": _w((lambda *s: torch.randn(*s, dtype=torch.bfloat16) * 0.1)(B, S, D)),
            "w_r": _w((lambda *s: torch.randn(*s, dtype=torch.bfloat16) * 3.2)(D)),
            "w_gate": _w((lambda *s: torch.randn(*s, dtype=torch.bfloat16) * 1.6)(D, F)),
            "w_up": _w((lambda *s: torch.randn(*s, dtype=torch.bfloat16) * 1.6)(D, F)),
            "w_down": _w((lambda *s: torch.randn(*s, dtype=torch.bfloat16) * 1.6)(F, D)),
        }
    _B_in = _B_setup()

    return {
        "A_x": _A_in["x"],
        "A_k_cache": _A_in["k_cache"],
        "A_v_cache": _A_in["v_cache"],
        "A_wq": _A_in["wq"],
        "A_wo": _A_in["wo"],
        "B_x": _B_in["x"],
        "B_w_r": _B_in["w_r"],
        "B_w_gate": _B_in["w_gate"],
        "B_w_up": _B_in["w_up"],
        "B_w_down": _B_in["w_down"],
    }

def reference(A_x, A_k_cache, A_v_cache, A_wq, A_wo, B_x, B_w_r, B_w_gate, B_w_up, B_w_down):
    def _A_ref(x, k_cache, v_cache, wq, wo):
        B, Sq, D = x.shape
        Hq, Dh = 32, 128
        Hkv, Sk = k_cache.shape[1], k_cache.shape[2]
        W = min(4096, max(256, Sk // 4))
        rep = Hq // Hkv
        q = (lambda x, *d: x.permute(*d))((x @ wq).reshape(B, Sq, Hq, Dh), 0, 2, 1, 3)
        k = (lambda x, n, axis: torch.repeat_interleave(x, n, dim=axis))(k_cache[:, :, Sk - W:, :], rep, axis=1)
        v = (lambda x, n, axis: torch.repeat_interleave(x, n, dim=axis))(v_cache[:, :, Sk - W:, :], rep, axis=1)
        scores = torch.einsum("bhqd,bhkd->bhqk", q, k) * (Dh ** -0.5)
        p = _softmax(scores, axis=-1)
        o = torch.einsum("bhqk,bhkd->bhqd", p, v)
        return (lambda x, *d: x.permute(*d))(o, 0, 2, 1, 3).reshape(B, Sq, Hq * Dh) @ wo

    def _B_ref(x, w_r, w_gate, w_up, w_down):
        B, S, D = x.shape
        C = 8
        r = x @ w_r
        idx = torch.argsort(-r, axis=-1)[:, :C]
        idx_e = (lambda x, n, axis: torch.repeat_interleave(x, n, dim=axis))(idx.reshape(B, C, 1), D, axis=2)
        x_sel = (lambda x, i, axis: torch.take_along_dim(x, i, dim=axis))(x, idx_e, axis=1)
        g = _silu(x_sel @ w_gate)
        u = x_sel @ w_up
        y = (g * u) @ w_down
        r_sel = _sigmoid((lambda x, i, axis: torch.take_along_dim(x, i, dim=axis))(r, idx, axis=1))
        y = y * r_sel.reshape(B, C, 1)
        b_off = (torch.arange(B) * S).reshape(B, 1)
        flat_idx = (idx + b_off).reshape(B * C)
        zero = (x * 0.0).reshape(B * S, D)
        upd = _scatter_add(zero, flat_idx, y.reshape(B * C, D), axis=0)
        return x + upd.reshape(B, S, D)

    x = A_x
    xn = _layernorm(x, axis=-1)
    s = _A_ref(xn, A_k_cache, A_v_cache, A_wq, A_wo)
    g = _silu(_B_ref(xn, B_w_r, B_w_gate, B_w_up, B_w_down))
    return x + s * g
```

```python
import re

class I:
    __slots__ = ('text', 'tag', 'opt', 'kind', 'arg')
    def __init__(self, text, tag=None, opt=None, kind='i', arg=None):
        self.text = text; self.tag = tag; self.opt = opt; self.kind = kind; self.arg = arg
    def __repr__(self): return f'I({self.text!r},{self.tag},{self.kind},{self.arg})'

def wait_vm(*tags): return I('', kind='waitvm', arg=tags)
def wait_lg(*tags): return I('', kind='waitlg', arg=tags)
def wait_both(vm, lg): return I('', kind='waitboth', arg=(vm, lg))
def label(name): return I(name + ':', kind='label')
def raw(text): return I(text, kind='raw')

REG_RE = re.compile(r'^(-|abs\()?([vas])(\d+)\)?$')
RNG_RE = re.compile(r'^(-|abs\()?([vas])\[(\d+):(\d+)\]\)?$')

def regs_of(op):
    op = op.strip()
    m = REG_RE.match(op)
    if m: return [(m.group(2), int(m.group(3)))]
    m = RNG_RE.match(op)
    if m: return [(m.group(2), r) for r in range(int(m.group(3)), int(m.group(4)) + 1)]
    if op == 'vcc': return [('s', 'vcc')]
    if op in ('vcc_lo', 'vcc_hi'): return [('s', 'vcc')]
    if op == 'exec': return [('s', 'exec')]
    if op == 'm0': return [('s', 'm0')]
    return []

TRANS = ('v_exp_f32', 'v_log_f32', 'v_rcp_f32', 'v_rsq_f32', 'v_sqrt_f32', 'v_sin_f32', 'v_cos_f32')

def split_ops(s):
    out, depth, cur = [], 0, ''
    for ch in s:
        if ch == '[': depth += 1
        if ch == ']': depth -= 1
        if ch == ',' and depth == 0:
            out.append(cur.strip()); cur = ''
        else: cur += ch
    if cur.strip(): out.append(cur.strip())
    return out

class Dec:
    __slots__ = ('mn', 'cls', 'wr', 'rd', 'passes', 'C', 'AB', 'dpp', 'wide_store', 'nops', 'text')

def decode(text):
    t = text.split(';')[0].strip()
    d = Dec(); d.text = text
    parts = t.split(None, 1)
    mn = parts[0]; d.mn = mn
    rest = parts[1] if len(parts) > 1 else ''
    ops = split_ops(rest)
    mods = ''
    if ops:
        last = ops[-1].split(None, 1)
        ops[-1] = last[0]
        mods = last[1] if len(last) > 1 else ''
    d.wr, d.rd, d.passes, d.C, d.AB, d.dpp, d.wide_store, d.nops = [], [], 0, [], [], False, False, 1
    R = lambda i: regs_of(ops[i]) if i < len(ops) else []
    allr = lambda i0: [r for k in range(i0, len(ops)) for r in regs_of(ops[k])]
    if mn.startswith('v_mfma'):
        d.cls = 'mfma'
        d.passes = 8 if '32x32' in mn else 4
        d.wr = R(0); d.AB = R(1) + R(2); d.C = R(3); d.rd = d.AB + d.C
    elif mn == 's_nop':
        d.cls = 'salu'; d.nops = int(ops[0], 0) + 1
    elif mn.startswith('s_waitcnt') or mn in ('s_barrier', 's_endpgm', 's_branch', 's_sleep', 's_setprio') or mn.startswith('s_cbranch'):
        d.cls = 'ctl'
        if mn in ('s_cbranch_vccz', 's_cbranch_vccnz'): d.rd = [('s', 'vcc')]
    elif mn.startswith('s_load') or mn in ('s_memtime', 's_memrealtime'):
        d.cls = 'smem'; d.wr = R(0); d.rd = allr(1)
    elif mn.startswith('s_cmp') or mn.startswith('s_bitcmp'):
        d.cls = 'salu'; d.rd = allr(0)
    elif mn.startswith('s_'):
        d.cls = 'salu'; d.wr = R(0); d.rd = allr(1)
        if 'saveexec' in mn: d.wr = d.wr + [('s', 'exec')]; d.rd = d.rd + [('s', 'exec')]
        if mn in ('s_addk_i32', 's_mulk_i32', 's_cmov_b32', 's_cmov_b64'): d.rd = d.rd + R(0)
    elif mn.startswith('ds_'):
        d.cls = 'ds'
        if mn.startswith('ds_read') or mn.startswith('ds_bpermute') or mn.startswith('ds_permute') or mn.startswith('ds_swizzle') or '_rtn_' in mn:
            d.wr = R(0); d.rd = allr(1)
        else:
            d.rd = allr(0)
    elif mn.startswith('buffer_') or mn.startswith('global_'):
        d.cls = 'vmem'
        lds = re.search(r'\blds\b', mods) is not None
        if mn in ('buffer_wbl2', 'buffer_inv'):
            pass
        elif 'load' in mn:
            if lds: d.rd = allr(0) + [('s', 'm0')]; d.cls = 'dma'
            else: d.wr = R(0); d.rd = allr(1)
        elif 'atomic' in mn:
            d.rd = allr(0)
            if 'sc0' in mods: d.wr = R(0)
        else:
            d.rd = allr(0)
            if mn.endswith('x4') or mn.endswith('x3'):
                d.wide_store = True
                d.C = R(0) if mn.startswith('buffer') else R(1)
    elif mn.startswith('v_'):
        d.cls = 'trans' if any(mn.startswith(x) for x in TRANS) else 'valu'
        if 'dpp' in mn or 'row_' in mods or 'quad_perm' in mods or 'wave_' in mods: d.dpp = True
        if mn.startswith('v_cmp'):
            d.wr = R(0); d.rd = allr(1)
            if mn.startswith('v_cmpx'): d.wr = d.wr + [('s', 'exec')]
        elif mn.startswith('v_permlane') and 'swap' in mn:
            d.wr = R(0) + R(1); d.rd = R(0) + R(1); d.cls = 'perm'
        elif mn.startswith('v_readlane') or mn.startswith('v_readfirstlane'):
            d.wr = R(0); d.rd = allr(1); d.cls = 'rdlane'
        elif mn.startswith('v_writelane'):
            d.wr = R(0); d.rd = allr(0); d.cls = 'wrlane'
        elif re.match(r'v_(add|sub|subrev)_co_u32', mn):
            d.wr = R(0) + R(1); d.rd = allr(2)
        elif re.match(r'v_(addc|subb|subbrev)_co_u32', mn):
            d.wr = R(0) + R(1); d.rd = allr(2)
        elif mn.startswith('v_cndmask'):
            d.wr = R(0); d.rd = allr(1)
            if len(ops) == 3: d.rd = d.rd + [('s', 'vcc')]
        elif mn.startswith('v_fmac') or mn.startswith('v_dot2c') or mn.startswith('v_mac') or mn.startswith('v_pk_fmac'):
            d.wr = R(0); d.rd = allr(0)
        elif mn.startswith('v_div_scale'):
            d.wr = R(0) + R(1); d.rd = allr(2)
        elif mn.startswith('v_div_fmas'):
            d.wr = R(0); d.rd = allr(1) + [('s', 'vcc')]
        else:
            d.wr = R(0); d.rd = allr(1)
        if d.dpp and not mn.startswith('v_mov'):
            pass
        if d.dpp:
            d.rd = d.rd + R(0)
    else:
        raise ValueError('cannot decode: ' + text)
    return d

class Prog:
    def __init__(self):
        self.l = []
        self.opt = None
    def __call__(self, text, tag=None):
        for ln in text.strip('\n').split('\n'):
            ln = ln.strip()
            if not ln: continue
            self.l.append(I(ln, tag=tag, opt=self.opt))
    def add(self, it):
        if isinstance(it, str): self(it)
        elif isinstance(it, (list, tuple)):
            for x in it: self.add(x)
        else:
            it.opt = self.opt if it.opt is None else it.opt
            self.l.append(it)
    def label(self, n): self.add(label(n))

def resolve(items):
    out = []
    vmq = []
    lgq = []
    def count_after(q, tags, opt):
        idx = -1
        for k, (t, o) in enumerate(q):
            if t in tags: idx = k
        if idx < 0: return None
        n = 0
        for (t, o) in q[idx + 1:]:
            if o is None or o == opt: n += 1
        return n
    for it in items:
        if it.kind == 'i':
            mn = it.text.split()[0]
            if mn.startswith('buffer_') or mn.startswith('global_'):
                vmq.append((it.tag, it.opt))
            elif mn.startswith('ds_'):
                lgq.append((it.tag, it.opt))
            elif mn.startswith('s_load') or mn in ('s_memtime', 's_memrealtime'):
                lgq.append(('SMEM', it.opt))
            out.append(it)
        elif it.kind in ('waitvm', 'waitlg', 'waitboth'):
            vm = it.arg if it.kind == 'waitvm' else (it.arg[0] if it.kind == 'waitboth' else None)
            lg = it.arg if it.kind == 'waitlg' else (it.arg[1] if it.kind == 'waitboth' else None)
            s = []
            if vm is not None:
                n = 0 if vm == ('ALL',) or vm == 'ALL' else count_after(vmq, vm if isinstance(vm, tuple) else (vm,), it.opt)
                if n is None: raise ValueError(f'wait_vm: no op tagged {vm}')
                s.append(f'vmcnt({min(n, 63)})')
            if lg is not None:
                tags = lg if isinstance(lg, tuple) else (lg,)
                if tags == ('ALL',): n = 0
                else:
                    n = count_after(lgq, tags, it.opt)
                    if n is None: raise ValueError(f'wait_lg: no op tagged {lg}')
                    if any(t == 'SMEM' for (t, o) in lgq[-64:] if True) and False: n = 0
                if n > 15: n = 15
                s.append(f'lgkmcnt({n})')
            out.append(I('s_waitcnt ' + ' '.join(s), opt=it.opt))
        else:
            out.append(it)
    return out

def check(items, name='', skip_opt=None, verbose=True):
    errs = []
    seq = []
    for it in items:
        if skip_opt and it.opt in skip_opt: continue
        if it.kind != 'i':
            seq.append(None); continue
        seq.append(decode(it.text))
    pos = 0
    lastw = {}
    lastC = {}
    laststore = {}
    pend_lg = []
    pend_vm = []
    pendreg = {}
    def need(d, reg, n, why):
        if reg in lastw:
            p, c, pd = lastw[reg]
            dist = pos - p - 1
            if dist < n: errs.append(f'{name}: hazard {why}: need {n} have {dist}: [{pd.text}] -> [{d.text}] reg {reg}')
    for d in seq:
        if d is None:
            continue
        if d.mn == 's_waitcnt':
            m = re.search(r'vmcnt\((\d+)\)', d.text)
            if m:
                n = int(m.group(1))
                while len(pend_vm) > n:
                    for r in pend_vm.pop(0):
                        if pendreg.get(r) and pendreg[r][0] == 'vm':
                            pendreg[r] = ('vm', pendreg[r][1] - 1)
                            if pendreg[r][1] == 0: del pendreg[r]
            m = re.search(r'lgkmcnt\((\d+)\)', d.text)
            if m:
                n = int(m.group(1))
                has_smem = any(x[0] == 'smem' for x in pend_lg)
                if has_smem and n > 0: errs.append(f'{name}: lgkmcnt({n}) with SMEM outstanding')
                while len(pend_lg) > n:
                    for r in pend_lg.pop(0)[1]:
                        if pendreg.get(r) and pendreg[r][0] == 'lg':
                            pendreg[r] = ('lg', pendreg[r][1] - 1)
                            if pendreg[r][1] == 0: del pendreg[r]
        for r in list(d.rd) + list(d.wr):
            if r in pendreg and d.cls not in ('ctl',):
                if r in d.wr and r not in d.rd and ((d.cls == 'ds' and pendreg[r][0] == 'lg') or (d.cls == 'vmem' and pendreg[r][0] == 'vm')):
                    continue
                errs.append(f'{name}: use of pending load reg {r} ({pendreg[r][0]}) in [{d.text}]')
        if d.cls == 'mfma':
            for r in d.rd:
                if r in lastw:
                    p, c, pd = lastw[r]
                    if c in ('valu', 'trans', 'perm', 'wrlane', 'rdlane'): need(d, r, 2, 'valu->mfma')
                    elif c == 'mfma':
                        if r in d.C and pd.wr == d.C and pd.passes == d.passes: pass
                        elif r in d.C and r not in d.AB: need(d, r, pd.passes + 2, 'mfma->mfma C overlap')
                        else: need(d, r, pd.passes + 4, 'mfma->mfma AB')
            for r in d.wr:
                if r in lastw and lastw[r][1] == 'mfma' and not (lastw[r][2].wr == d.wr and lastw[r][2].passes == d.passes):
                    need(d, r, lastw[r][2].passes + 2, 'mfma->mfma WAW')
        else:
            for r in list(d.rd) + list(d.wr):
                if r in lastw and lastw[r][1] == 'mfma': need(d, r, lastw[r][2].passes + 4, 'mfma->other')
            if d.cls in ('valu', 'trans', 'perm', 'rdlane', 'wrlane'):
                for r in d.wr:
                    if r in lastC:
                        p, passes = lastC[r]
                        n = passes - 1
                        if pos - p - 1 < n: errs.append(f'{name}: hazard mfmaC WAR need {n}: [{d.text}] reg {r}')
                    if r in laststore and pos - laststore[r] - 1 < 2:
                        errs.append(f'{name}: hazard store-data WAR: [{d.text}] reg {r}')
                for r in d.rd:
                    if r in lastw:
                        p, c, pd = lastw[r]
                        if c == 'trans' and d.cls != 'trans' and r[0] != 's': need(d, r, 1, 'trans->valu')
                        if d.dpp and c in ('valu', 'trans', 'perm', 'wrlane') and r[0] == 'v': need(d, r, 2, 'valu->dpp')
                        if d.cls == 'perm' and c in ('valu', 'trans', 'perm', 'wrlane'): need(d, r, 2, 'valu->permlane')
                        if d.cls == 'rdlane' and r[0] == 'v' and c in ('valu', 'trans', 'perm', 'wrlane'): need(d, r, 1, 'valu->readlane')
                        if r[0] == 's' and c in ('valu', 'rdlane', 'trans'):
                            lastop = d.text.split(';')[0].strip().split(',')[-1].strip()
                            if d.cls in ('rdlane', 'wrlane') and not d.mn.startswith('v_readfirst') and regs_of(lastop) == [r]: need(d, r, 4, 'valu sgpr->lanesel')
                            else: need(d, r, 2, 'valu sgpr->valu const')
            if d.cls in ('vmem', 'dma'):
                for r in d.rd:
                    if r in lastw:
                        p, c, pd = lastw[r]
                        if r[0] == 's' and c in ('valu', 'rdlane', 'trans'): need(d, r, 5, 'valu sgpr->vmem')
                        if r == ('s', 'm0') and c == 'salu': need(d, r, 1, 'm0->dma')
            if d.cls in ('salu', 'ctl', 'smem'):
                for r in d.rd:
                    if r in lastw and r[0] == 's' and r[1] != 'vcc' and lastw[r][1] in ('valu', 'rdlane', 'trans'): need(d, r, 1, 'valu sgpr->salu (pad)')
            if d.cls in ('ds', 'vmem') :
                for r in d.wr:
                    if r in laststore and pos - laststore[r] - 1 < 1:
                        errs.append(f'{name}: hazard store-data WAR(load): [{d.text}] reg {r}')
        for r in d.wr:
            lastw[r] = (pos + d.nops - 1, d.cls, d)
        if d.cls == 'mfma':
            for r in d.C: lastC[r] = (pos, d.passes)
        if d.wide_store:
            for r in d.C: laststore[r] = pos
        if d.cls == 'ds':
            pend_lg.append(('ds', d.wr))
            for r in d.wr:
                c = pendreg.get(r); pendreg[r] = ('lg', (c[1] if c and c[0] == 'lg' else 0) + 1)
        elif d.cls == 'smem':
            pend_lg.append(('smem', d.wr))
            for r in d.wr:
                c = pendreg.get(r); pendreg[r] = ('lg', (c[1] if c and c[0] == 'lg' else 0) + 1)
        elif d.cls in ('vmem', 'dma'):
            pend_vm.append(d.wr)
            for r in d.wr:
                c = pendreg.get(r); pendreg[r] = ('vm', (c[1] if c and c[0] == 'vm' else 0) + 1)
        pos += d.nops
    return errs

def render(items):
    out = []
    for it in items:
        if it.kind == 'label': out.append(it.text)
        elif it.kind == 'raw': out.append(it.text)
        else: out.append('  ' + it.text)
    return '\n'.join(out) + '\n'
```

```python
import sys, math
from asmlib import *

KN = 'recurrent_scan__sliding_block_cached__moe_arch_mod__prompt_kernel'
X = 0; XROW = 1040
Wb = 66560; WSL = 4352; WRING = 4 * WSL
KR = 136192; KT = 8704
M = 153600
M_STAT = M
M_TOP = M + 2048
M_FLAG = M + 2304
M_FFN = M + 2560
LDS_TOTAL = 163840
WS_R = 0x0
WS_YF = 0x8000
WS_XN = 0x10000
WS_YP = 0x220000
WS_OP = 0x400000
WS_OF = 0x1400000
WS_DBG = 0x2000000
CSCALE = math.log2(math.e) / math.sqrt(128.0)

def f32hex(x):
    import struct
    return '0x%08x' % struct.unpack('<I', struct.pack('<f', x))[0]

S_W, S_G, S_I, S_T0 = 's3', 's4', 's5', 's6'
SRD_X, SRD_K, SRD_V, SRD_WQ, SRD_WO, SRD_WS, SRD_OUT, SRD_AUX, SRD_AUX2 = [f's[{a}:{a+3}]' for a in (8, 12, 16, 20, 24, 28, 32, 36, 40)]
S_RING = 's80'; S_NONCE = 's81'; S_SOFF = 's82'; S_KV = 's83'
S_ONES = 's92'; S_HMASK = 's93'; S_U = 's94'; S_KW = 's98'
V_LANE = 'v1'; V_L16 = 'v2'; V_XB = 'v3'; V_WT = 'v4'
V_WD = ['v5', 'v6', 'v7', 'v8']
V_KR = ['v9', 'v10']; V_VT = 'v11'; V_KD = ['v12', 'v13']; V_VD = ['v14', 'v15']
V_MB = 'v16'; V_SD = 'v17'
V_B0 = 'v32'; V_B1 = 'v33'; V_XO = 'v34'; V_TOP = 'v35'; V_L0 = 'v44'
S_FB = 's101'
FG = Wb; FU = Wb + 16512; FD = Wb + 33024; FP = Wb + 50432
S_PA = 's84'; S_PB = 's85'; S_INB = 's86'; S_XO = 's87'; S_D1 = 88; S_D2 = 44

ACC = 128
SB = 64
PB = 48
V_L = ['v46', 'v47']
A_QA = 0
A_QB = 32
A_K = 64
A_V = 96
A_Q = 192
A_V2 = 128
A_DUM = 184

def vr(b, n=4): return f'v[{b}:{b+n-1}]'
def ar(b, n=4): return f'a[{b}:{b+n-1}]'

def srd(p, dst, lo, size):
    p(f's_mov_b32 s{dst}, s{lo}\ns_mov_b32 s{dst+1}, s{lo+1}\ns_mov_b32 s{dst+2}, {size}\ns_mov_b32 s{dst+3}, 0x20000')

def interleave(p, mfmas, fills):
    for i, m in enumerate(mfmas):
        p.add(m)
        for f in fills[i]: p.add(f)

class Gen:
    def __init__(self, dump=None, timing=False):
        self.p = Prog()
        self.dump = dump
        self.timing = timing
        self.nstamp = 0
        self.iter_hooks = {}
        self.moe = False

    def stamp(self):
        if not self.timing: return
        p = self.p
        k = self.nstamp; self.nstamp += 1
        p('s_memtime s[96:97]')
        p.add(I('s_waitcnt lgkmcnt(0)'))
        p(f'v_writelane_b32 v45, s96, {k}')

    def prologue(self):
        p = self.p
        p('s_cmp_ge_u32 s2, 256')
        p('s_cbranch_scc1 L_END')
        p('s_load_dwordx16 s[44:59], s[0:1], 0')
        p('s_load_dwordx8 s[60:67], s[0:1], 64')
        p('s_load_dwordx2 s[68:69], s[0:1], 96')
        p(f'''
v_and_b32 {V_LANE}, 63, v0
v_lshrrev_b32 v18, 6, v0
v_lshlrev_b32 {V_L16}, 4, {V_LANE}
s_and_b32 s70, s2, 7
s_lshr_b32 s71, s2, 3
v_readfirstlane_b32 {S_W}, v18
s_and_b32 s72, s70, 3
s_lshl_b32 s72, s72, 1
s_and_b32 s73, s71, 1
s_or_b32 {S_G}, s72, s73
s_lshr_b32 s72, s70, 2
s_lshl_b32 s72, s72, 4
s_lshr_b32 {S_U}, s71, 1
s_or_b32 {S_I}, s72, {S_U}
s_lshl_b32 {S_T0}, {S_I}, 6
s_lshl_b32 s72, {S_W}, 4
s_add_u32 s73, {S_T0}, s72
s_lshl_b32 s73, s73, 10
s_mul_i32 s74, s72, {XROW}
''')
        p.add(I('s_waitcnt lgkmcnt(0)'))
        if self.timing:
            p('v_mov_b32 v45, 0')
            self.stamp()
        srd(p, 8, 44, 2048 * 512 * 2)
        for q in range(16):
            p(f's_add_u32 m0, s74, {X + q * XROW}')
            p(f's_add_u32 s75, s73, {q * 1024}')
            p(f'buffer_load_dwordx4 {V_L16}, {SRD_X}, s75 offen lds', tag='x')
        srd(p, 20, 50, 512 * 4096 * 2)
        srd(p, 28, 68, 0x10000000)
        p(f'''
v_lshrrev_b32 v18, 4, {V_LANE}
v_and_b32 v19, 15, {V_LANE}
v_lshlrev_b32 v20, 15, v18
v_lshlrev_b32 v21, 4, v19
s_lshl_b32 s72, {S_G}, 10
s_lshl_b32 s75, {S_W}, 8
s_add_u32 s72, s72, s75
v_add3_u32 {V_WD[0]}, v20, v21, s72
v_add_u32 {V_WD[1]}, {8192-1088}, {V_WD[0]}
v_add_u32 {V_WD[2]}, {2*(8192-1088)}, {V_WD[0]}
v_add_u32 {V_WD[3]}, {3*(8192-1088)}, {V_WD[0]}
s_mul_i32 {S_RING}, {S_W}, {WRING}
s_add_u32 {S_RING}, {S_RING}, {Wb}
''')
        srd(p, 36, 56, 1024)
        p(f'''
s_lshl_b32 s72, {S_G}, 3
s_lshl_b32 s75, {S_W}, 1
s_add_u32 s95, s72, s75
s_add_u32 s72, s95, {S_T0}
s_lshl_b32 s72, s72, 10
s_add_u32 s75, s72, 1024
''')
        p(f'buffer_load_dwordx4 v[36:39], {V_L16}, {SRD_X}, s72 offen', tag='rx')
        p(f'buffer_load_dwordx4 v[40:43], {V_L16}, {SRD_X}, s75 offen', tag='rx')
        p(f'buffer_load_dwordx4 a[176:179], {V_L16}, {SRD_AUX}, 0 offen', tag='rx')
        for s in range(4):
            self.wq_dma(s)
        srd(p, 12, 46, 8 * 2048 * 128 * 2)
        srd(p, 16, 48, 8 * 2048 * 128 * 2)
        srd(p, 24, 52, 4096 * 512 * 2)
        srd(p, 32, 64, 2048 * 512 * 2)
        p('s_getpc_b64 s[70:71]')
        p.label('L_PC')
        p(f'''
s_lshl_b32 s72, {S_W}, 13
v_lshlrev_b32 v18, 7, {V_LANE}
v_add_u32 v18, s72, v18
v_add_u32 v19, 32768, v18
v_min_u32 v18, L_CODE_END-L_PC-4, v18
v_min_u32 v19, L_CODE_END-L_PC-4, v19
''')
        p(f'global_load_dword a{A_DUM}, v18, s[70:71]', tag='pf')
        p(f'global_load_dword a{A_DUM+1}, v19, s[70:71]', tag='pf')
        p(f'''
v_lshrrev_b32 v18, 3, {V_LANE}
v_and_b32 v19, 7, {V_LANE}
v_lshlrev_b32 v18, 13, v18
v_lshlrev_b32 v19, 7, v19
s_lshl_b32 s72, {S_U}, 5
s_lshl_b32 s75, {S_W}, 3
s_add_u32 s72, s72, s75
s_lshl_b32 s72, s72, 13
s_lshl_b32 s75, {S_G}, 10
s_add_u32 s72, s72, s75
v_add3_u32 v18, v18, v19, s72
''')
        p(f'buffer_load_dword a{A_DUM+2}, v18, {SRD_WQ}, 0 offen', tag='pf')
        p(f'''
v_lshlrev_b32 v18, 6, {V_LANE}
s_lshl_b32 s72, {S_G}, 19
s_lshl_b32 s75, {S_U}, 13
s_add_u32 s72, s72, s75
s_and_b32 s75, {S_W}, 1
s_lshl_b32 s75, s75, 12
s_add_u32 s72, s72, s75
s_add_u32 s72, s72, {1536*256}
''')
        p(f'buffer_load_dword a{A_DUM+3}, v18, {SRD_K}, s72 offen', tag='pf')
        p(f'buffer_load_dword a{A_DUM+4}, v18, {SRD_V}, s72 offen', tag='pf')
        p(f'''
v_lshlrev_b32 v18, 7, {V_LANE}
s_lshl_b32 s72, {S_G}, 19
s_lshl_b32 s75, {S_U}, 15
s_add_u32 s72, s72, s75
s_lshl_b32 s75, {S_W}, 13
s_add_u32 s72, s72, s75
''')
        p(f'buffer_load_dword a{A_DUM+5}, v18, {SRD_WO}, s72 offen', tag='pf')
        p(f'''
v_and_b32 v18, 31, {V_LANE}
v_lshrrev_b32 v19, 5, {V_LANE}
v_mul_u32_u24 {V_XB}, {XROW}, v18
v_lshlrev_b32 v20, 4, v19
v_add_u32 {V_XB}, {V_XB}, v20
''')
        if X: p(f'v_add_u32 {V_XB}, {X}, {V_XB}')
        p(f'''
v_and_b32 v20, 15, {V_LANE}
v_lshrrev_b32 v20, 2, v20
v_and_b32 v21, 3, {V_LANE}
v_lshrrev_b32 v22, 4, {V_LANE}
v_mul_u32_u24 v23, 1088, v20
v_and_b32 v24, 1, v22
v_lshlrev_b32 v24, 5, v24
v_add_u32 v23, v23, v24
v_lshlrev_b32 v25, 9, v19
v_and_b32 v26, 1, v21
v_lshlrev_b32 v26, 4, v26
v_lshrrev_b32 v27, 1, v21
v_lshlrev_b32 v27, 3, v27
v_add3_u32 {V_WT}, v23, v25, v26
v_add3_u32 {V_WT}, {V_WT}, v27, {S_RING}
v_lshlrev_b32 v25, 8, v19
v_lshlrev_b32 v26, 3, v21
v_add3_u32 {V_VT}, v23, v25, v26
''')
        p(f'''
v_lshrrev_b32 v20, 2, v18
v_and_b32 v21, 3, v18
v_mul_u32_u24 v22, 1088, v20
v_lshlrev_b32 v23, 8, v21
v_add_u32 v22, v22, v23
v_add_u32 v22, {KR}, v22
v_xor_b32 v23, v19, v21
v_lshl_add_u32 {V_KR[0]}, v23, 4, v22
v_or_b32 v23, 2, v19
v_xor_b32 v23, v23, v21
v_lshl_add_u32 {V_KR[1]}, v23, 4, v22
''')
        p(f'''
v_lshrrev_b32 v20, 4, {V_LANE}
v_and_b32 v21, 15, {V_LANE}
v_xor_b32 v22, v21, v20
v_lshlrev_b32 v22, 4, v22
v_lshl_add_u32 v22, v20, 8, v22
s_lshl_b32 s72, {S_G}, 19
s_add_u32 s72, s72, {1536*256}
s_lshl_b32 s75, {S_W}, 11
s_add_u32 s75, s75, s72
v_add_u32 {V_KD[0]}, s75, v22
v_subrev_u32 {V_KD[1]}, 64, {V_KD[0]}
v_lshlrev_b32 v22, 10, v20
v_lshl_add_u32 v22, v21, 4, v22
s_lshr_b32 s75, {S_W}, 1
s_lshl_b32 s75, s75, 12
s_add_u32 s72, s72, s75
s_and_b32 s75, {S_W}, 1
s_lshl_b32 s75, s75, 9
s_add_u32 s72, s72, s75
v_add_u32 {V_VD[0]}, s72, v22
v_subrev_u32 {V_VD[1]}, 832, {V_VD[0]}
s_mul_i32 {S_KW}, {S_W}, 2176
s_mov_b32 s99, 0x2b800000
s_mov_b32 s100, 0x53800000
s_mov_b32 {S_ONES}, 0x3f803f80
s_mov_b32 {S_HMASK}, 0xffff0000
s_lshl_b32 s72, {S_W}, 8
v_add_u32 v19, s72, {V_XB}
''')
        p(f'v_cmp_eq_u32 vcc, 0, {V_LANE}')
        p('v_mov_b32 v20, 0x40000000')
        p('v_mov_b32 v21, 0')
        p(f'v_cndmask_b32 {V_L0}, v20, v21, vcc')
        p('s_or_b32 s72, s2, ' + S_W)
        p('s_cmp_lg_u32 s72, 0')
        p('s_cbranch_scc1 L_NONONCE')
        p.opt = 'nonce'
        srd(p, 40, 66, 256)
        p('s_memrealtime s[70:71]')
        p.add(I('s_waitcnt lgkmcnt(0)'))
        p('s_or_b32 s70, s70, 1')
        p('v_mov_b32 v18, s70')
        p('v_mov_b32 v20, 0')
        p(f'buffer_store_dword v18, v20, {SRD_AUX2}, 0 offen sc0 sc1', tag='nst')
        p.opt = None
        p.label('L_NONONCE')
        srd(p, 40, 66, 256)
        p.add(wait_vm('x'))
        p('s_barrier')
        self.stamp()
        p('v_mov_b32 v47, 0')
        p(f'buffer_load_dword v47, v47, {SRD_AUX2}, 0 offen sc0 sc1', tag='nonce')

    def wq_dma(self, s):
        p = self.p
        slot = s % 4
        p(f's_add_u32 m0, {S_RING}, {slot * WSL}')
        p(f's_mov_b32 {S_SOFF}, {s * 16 * 8192}')
        for r in range(4):
            p(f'buffer_load_dwordx4 {V_WD[r]}, {SRD_WQ}, {S_SOFF} offen offset:{r*1088} lds', tag=f'wq{s}')

    def stats(self):
        p = self.p
        xr = lambda tt, k, q=0: SB + (tt * 8 + k) * 4 + q
        for k in range(8):
            for tt in range(2):
                p(f'ds_read_b128 {vr(xr(tt,k))}, v19 offset:{k*32 + tt*32*XROW}', tag=f'xf{k}')
        acc = lambda tt, s, ch: 20 + tt * 4 + s * 2 + ch
        for r in range(20, 28): p(f'v_mov_b32 v{r}, 0')
        for k in range(8):
            p.add(wait_lg(f'xf{k}'))
            for tt in range(2):
                for q in range(4):
                    x = xr(tt, k, q)
                    p(f'v_dot2_f32_bf16 v{acc(tt,0,q%2)}, v{x}, {S_ONES}, v{acc(tt,0,q%2)}')
                    p(f'v_dot2_f32_bf16 v{acc(tt,1,q%2)}, v{x}, v{x}, v{acc(tt,1,q%2)}')
        p('s_nop 2')
        for tt in range(2):
            for s in range(2):
                p(f'v_add_f32 v{acc(tt,s,0)}, v{acc(tt,s,0)}, v{acc(tt,s,1)}')
        for tt in range(2):
            for s in range(2):
                p(f'v_mov_b32 v{acc(tt,s,1)}, v{acc(tt,s,0)}')
        p('s_nop 1')
        for tt in range(2):
            for s in range(2):
                p(f'v_permlane32_swap_b32 v{acc(tt,s,0)}, v{acc(tt,s,1)}')
        p(f'v_cmp_gt_u32 vcc, 32, {V_LANE}')
        for tt in range(2):
            for s in range(2):
                p(f'v_add_f32 v{acc(tt,s,0)}, v{acc(tt,s,0)}, v{acc(tt,s,1)}')
        p(f'v_cndmask_b32 v28, v{acc(1,0,0)}, v{acc(0,0,0)}, vcc')
        p(f'v_cndmask_b32 v29, v{acc(1,1,0)}, v{acc(0,1,0)}, vcc')
        p(f'''
s_lshl_b32 s72, {S_W}, 9
v_lshlrev_b32 v30, 3, {V_LANE}
v_add_u32 v30, {M_STAT}, v30
v_add_u32 v31, s72, v30
''')
        p('ds_write_b64 v31, v[28:29]', tag='stw')
        p.add(wait_lg('stw'))
        p('s_barrier')
        for w in range(4):
            p(f'ds_read_b64 v[{20+2*w}:{21+2*w}], v30 offset:{w*512}', tag='str')
        p.add(wait_lg('str'))
        p(f'''
v_add_f32 v20, v20, v22
v_add_f32 v21, v21, v23
v_add_f32 v24, v24, v26
v_add_f32 v25, v25, v27
v_add_f32 v20, v20, v24
v_add_f32 v21, v21, v25
v_mul_f32 v20, {f32hex(1/512)}, v20
v_mul_f32 v21, {f32hex(1/512)}, v21
v_fma_f32 v21, -v20, v20, v21
v_max_f32 v21, 0, v21
v_cvt_pk_bf16_f32 v22, v20, v21
v_lshlrev_b32 {V_MB}, 16, v22
v_and_b32 v21, {S_HMASK}, v22
v_add_f32 v21, {f32hex(1e-5)}, v21
v_cvt_pk_bf16_f32 v21, v21, v21
v_and_b32 v21, {S_HMASK}, v21
v_sqrt_f32 v21, v21
s_nop 0
v_cvt_pk_bf16_f32 v21, v21, v21
v_and_b32 {V_SD}, {S_HMASK}, v21
v_rcp_f32 v22, {V_SD}
s_nop 0
v_mul_f32 v30, {f32hex(CSCALE)}, v22
v_mul_f32 v31, {V_MB}, v30
v_sub_f32 v31, 0, v31
v_mov_b32 v32, v30
v_mov_b32 v33, v31
s_nop 1
v_permlane32_swap_b32 v30, v32
v_permlane32_swap_b32 v31, v33
''')
        p('s_nop 0')
        for k in range(8):
            for tt in range(2):
                pr = 30 + 2 * tt
                for q in range(0, 4, 2):
                    x0, x1 = xr(tt, k, q), xr(tt, k, q + 1)
                    p(f'''
v_lshlrev_b32 v34, 16, v{x0}
v_and_b32 v35, {S_HMASK}, v{x0}
v_lshlrev_b32 v20, 16, v{x1}
v_and_b32 v21, {S_HMASK}, v{x1}
v_pk_fma_f32 v[34:35], v[34:35], v[{pr}:{pr+1}], v[{pr}:{pr+1}] op_sel:[0,0,1] op_sel_hi:[1,0,1]
v_pk_fma_f32 v[20:21], v[20:21], v[{pr}:{pr+1}], v[{pr}:{pr+1}] op_sel:[0,0,1] op_sel_hi:[1,0,1]
v_cvt_pk_bf16_f32 v{x0}, v34, v35
v_cvt_pk_bf16_f32 v{x1}, v20, v21
''')
                p(f'ds_write_b128 v19, {vr(xr(tt,k))} offset:{k*32 + tt*32*XROW}', tag='xw')

    def qphase(self):
        p = self.p
        A = lambda st, dt: ar(A_QA + st * 16 + dt * 4)
        Bf = lambda st, tt: ar(A_QB + st * 8 + tt * 4)
        def reads(s):
            st = s % 2; slot = s % 4
            rd = []
            for dt in range(4):
                for q in range(2):
                    b = A_QA + st * 16 + dt * 4 + 2 * q
                    rd.append(I(f'ds_read_b64_tr_b16 a[{b}:{b+1}], {V_WT} offset:{slot*WSL + q*256 + dt*64}', tag=f'qr{s}'))
            for tt in range(2):
                rd.append(I(f'ds_read_b128 {Bf(st,tt)}, {V_XB} offset:{s*32 + tt*32*XROW}', tag=f'qr{s}'))
            return [rd[8], rd[0], rd[1], rd[9]] + rd[2:8]
        p.add(wait_lg('xw'))
        p('s_barrier')
        self.stamp()
        p.add(wait_vm('wq0'))
        p.add(reads(0))
        for s in range(32):
            cur = s % 2
            fills = [[] for _ in range(8)]
            if s + 1 < 32:
                p.add(wait_both((f'wq{s+1}',), (f'qr{s}',)))
                rd = reads(s + 1)
                for i, x in enumerate(rd): fills[i // 2].append(x)
            else:
                p.add(wait_lg(f'qr{s}'))
            dm = []
            if s + 4 < 32:
                t = s + 4
                fills[3].append(f's_add_u32 m0, {S_RING}, {(t % 4) * WSL}')
                fills[3].append(f's_mov_b32 {S_SOFF}, {t*16*8192}')
                for r in range(4):
                    fills[4 + r].append(I(f'buffer_load_dwordx4 {V_WD[r]}, {SRD_WQ}, {S_SOFF} offen offset:{r*1088} lds', tag=f'wq{t}'))
            if s == 4 and self.moe:
                L = self.granule_store()
                for i, x in enumerate(L): fills[min(7, i)].append(x)
            if s in (16, 17):
                k = self.k_dma(s - 16)
                fills[0] += k[:2]; fills[1].append(k[2]); fills[2].append(k[3])
            if s == 31:
                p.add(wait_vm('K1'))
                p('s_barrier')
                for ks, x in enumerate(self.k_reads(0)): fills[ks].append(x)
            if s in (28, 29, 30):
                L = self.o_setup()
                n = (len(L) + 2) // 3
                part = L[(s - 28) * n:(s - 27) * n]
                for i, x in enumerate(part): fills[min(7, i * 8 // len(part))].append(x)
            if s == 31:
                L = self.o_tr_setup()
                for i, x in enumerate(L): fills[min(7, i * 8 // len(L))].append(x)
            mf = []
            for i in range(8):
                dt, tt = i // 2, i % 2
                acc = ACC + (dt * 2 + tt) * 16
                c = '0' if s == 0 else vr(acc, 16)
                mf.append(f'v_mfma_f32_32x32x16_bf16 {vr(acc,16)}, {A(cur,dt)}, {Bf(cur,tt)}, {c}')
            interleave(p, mf, fills)

    def kslot(self, j): return KR + (j % 2) * KT
    def vslot(self, j): return X + (j % 3) * KT
    def k_reads(self, j):
        out = []
        for ks in range(8):
            out.append(I(f'ds_read_b128 {ar(A_K + ks*4)}, {V_KR[ks % 2]} offset:{self.kslot(j) - KR + (ks // 2) * 64}', tag=f'kr{j}_{ks}'))
        return out
    def v_reads(self, j, base=None):
        base = A_V if base is None else base
        out = []
        for ks2 in range(2):
            for dt in range(4):
                for rd in range(2):
                    b = base + (dt * 2 + ks2) * 4 + 2 * rd
                    out.append(I(f'ds_read_b64_tr_b16 a[{b}:{b+1}], {V_VT} offset:{self.vslot(j) + ks2*4352 + rd*512 + dt*64}', tag=f'vr{j}_{ks2}'))
        return out
    def k_dma(self, j):
        return [f's_add_u32 m0, {S_KW}, {self.kslot(j)}', f's_mov_b32 {S_KV}, {j*8192}',
                I(f'buffer_load_dwordx4 {V_KD[0]}, {SRD_K}, {S_KV} offen lds', tag=f'K{j}'),
                I(f'buffer_load_dwordx4 {V_KD[1]}, {SRD_K}, {S_KV} offen offset:1088 lds', tag=f'K{j}')]
    def v_dma(self, j):
        return [f's_add_u32 m0, {S_KW}, {self.vslot(j)}', f's_mov_b32 {S_KV}, {j*8192}',
                I(f'buffer_load_dwordx4 {V_VD[0]}, {SRD_V}, {S_KV} offen lds', tag=f'V{j}'),
                I(f'buffer_load_dwordx4 {V_VD[1]}, {SRD_V}, {S_KV} offen offset:1088 lds', tag=f'V{j}')]

    def S(self, j, tt, r=0): return SB + (j % 2) * 32 + tt * 16 + r
    def qk_mfma(self, j):
        out = []
        for ks in range(8):
            for tt in range(2):
                d = vr(self.S(j, tt), 16)
                out.append(f'v_mfma_f32_32x32x16_bf16 {d}, {ar(A_K + ks*4)}, {ar(A_Q + (ks*2+tt)*4)}, {"0" if ks == 0 else d}')
        return out
    def pv_mfma(self, j, vbase=None):
        vbase = A_V if vbase is None else vbase
        out = []
        for ks2 in range(2):
            for dt in range(4):
                for tt in range(2):
                    d = vr(ACC + (dt * 2 + tt) * 16, 16)
                    c = '0' if (j == 0 and ks2 == 0) else d
                    out.append(f'v_mfma_f32_32x32x16_bf16 {d}, {ar(vbase + (dt*2+ks2)*4)}, {vr(PB + (ks2*2+tt)*4)}, {c}')
        return out
    def sm(self, j, half):
        ex, ad, cv = [], [], []
        for tt in range(2):
            for r in range(8):
                x = self.S(j, tt, half * 8 + r)
                ex.append(f'v_exp_f32 v{x}, v{x}')
                ad.append(f'v_add_f32 {V_L[tt]}, {V_L[tt]}, v{x}')
            for q in range(4):
                x = self.S(j, tt, half * 8 + 2 * q)
                cv.append(f'v_cvt_pk_bf16_f32 v{PB + (half*2+tt)*4 + q}, v{x}, v{x+1}')
        return ex, ad, cv

    def transition_qa(self):
        p = self.p
        p.add(wait_lg('ALL'))
        p('s_barrier')
        for x in self.v_dma(0) + self.k_dma(2) + self.v_dma(1): p.add(x)
        self.stamp()
        def conv(dt):
            out = []
            t = 0
            for tt in range(2):
                acc = ACC + (dt * 2 + tt) * 16
                for u in range(2):
                    ks = 2 * dt + u
                    cv = [f'v_cvt_pk_bf16_f32 v{18+q}, v{acc+8*u+2*q}, v{acc+8*u+2*q+1}' for q in range(4)]
                    wr = [f'v_accvgpr_write_b32 a{A_Q + (ks*2+tt)*4 + q}, v{18+q}' for q in range(4)]
                    out += cv + wr
            return out
        qk = self.qk_mfma(0)
        kr1 = self.k_reads(1)
        p(f'v_mov_b32 {V_L[0]}, 0')
        p(f'v_mov_b32 {V_L[1]}, 0')
        p('s_nop 3')
        p.add(conv(0))
        for dt in range(1, 5):
            mf = qk[4 * (dt - 1): 4 * dt]
            if dt < 4:
                c = conv(dt)
                fills = [c[8 * i: 8 * i + 8] for i in range(4)]
            else:
                fills = [[] for _ in range(4)]
            if dt >= 2:
                for z, ks in enumerate((2 * (dt - 2), 2 * (dt - 2) + 1)):
                    fills[z].append(kr1[ks])
            if dt == 1: p('s_nop 1')
            interleave(p, mf, fills)
        p.add(kr1[6]); p.add(kr1[7])
        ex, ad, cv = self.sm(0, 0)
        p('s_nop 8')
        for i in range(14):
            p.add(ex[i])
            if i >= 1: p.add(ad[i - 1])
            if i >= 2 and i % 2 == 0: p.add(cv[i // 2 - 1])
        p.add(ad[13])

    def attention(self):
        p = self.p
        for j in range(15):
            self.att_iter(j)
        self.att_last()

    def att_iter(self, j):
        p = self.p
        fills = [[] for _ in range(32)]
        pre = [[] for _ in range(32)]
        e1p, a1p, c1p = self.sm(j, 0)
        e2, a2, c2 = self.sm(j, 1)
        e1, a1, c1 = self.sm(j + 1, 0)
        fills[0].append(e1p[14]); fills[0].append(c1p[6])
        fills[1].append(e1p[15]); fills[1].append(a1p[14])
        fills[2].append(a1p[15]); fills[2].append(c1p[7])
        for k in range(16):
            fills[2 + k].insert(0, e2[k])
            fills[3 + k].append(a2[k])
        for k in range(8):
            fills[4 + 2 * k].append(c2[k])
        for k in range(14):
            fills[18 + k].insert(0, e1[k])
            if 19 + k < 32: fills[19 + k].append(a1[k])
        fills[31].append('__A13__')
        cg = [24, 25, 26, 27, 28, 30]
        for k in range(6): fills[cg[k]].append(c1[k])
        fills[31] = [x for x in fills[31] if x != '__A13__']
        vmt = [f'V{j}']
        if j + 2 <= 15: vmt.append(f'K{j+2}')
        if j == 14: vmt.append('V15')
        fills[4].append(wait_both(tuple(vmt), 'ALL'))
        fills[4].append('s_barrier')
        if j + 3 <= 15:
            k = self.k_dma(j + 3)
            fills[5] += k[:2]; fills[7].append(k[2]); fills[9].append(k[3])
        if j >= 1 - 1 and j + 2 <= 15 and j + 2 >= 2:
            v = self.v_dma(j + 2)
            fills[11] += v[:2]; fills[13].append(v[2]); fills[15].append(v[3])
        vr_ = self.v_reads(j)
        for k in range(16): fills[5 + k].append(vr_[k])
        if j + 2 <= 15:
            kr = self.k_reads(j + 2)
            for ks, gp in enumerate([21, 22, 23, 25, 27, 29, 30, 31]): fills[gp].append(kr[ks])
        if j == 14:
            v15 = self.v_reads(15, base=A_V2)
            for k in range(16): fills[16 + k].append(v15[k])
        if j == 13:
            d = self.wo_dma(0); fills[5] += d[:2]
            for c, gp in enumerate((6, 7, 8, 9)): fills[gp].append(d[2 + c])
            d = self.wo_dma(1); fills[16] += d[:2]
            for c, gp in enumerate((17, 19, 22, 24)): fills[gp].append(d[2 + c])
        if j == 14:
            d = self.wo_dma(2); fills[5] += d[:2]
            for c, gp in enumerate((6, 7, 8, 9)): fills[gp].append(d[2 + c])
            d = self.wo_dma(3); fills[10] += d[:2]
            for c, gp in enumerate((11, 12, 13, 14)): fills[gp].append(d[2 + c])
        fills[31].append(a1[13])
        pre[0].append(wait_lg(f'kr{j+1}_3'))
        pre[16].append(wait_lg(f'vr{j}_0'))
        pre[24].append(wait_lg(f'vr{j}_1'))
        mf = self.qk_mfma(j + 1) + self.pv_mfma(j)
        for g_ in range(32):
            for x in pre[g_]: p.add(x)
            p.add(mf[g_])
            for x in fills[g_]: p.add(x)
        for hook in self.iter_hooks.get(j, []): hook()

    def att_last(self):
        p = self.p
        j = 15
        e1p, a1p, c1p = self.sm(j, 0)
        e2, a2, c2 = self.sm(j, 1)
        p.add(e1p[14]); p.add(e1p[15]); p.add(c1p[6]); p.add(a1p[14]); p.add(a1p[15]); p.add(c1p[7])
        p.add(wait_lg('vr15_1'))
        p('s_barrier')
        mf = self.pv_mfma(15, vbase=A_V2)
        fills = [[] for _ in range(16)]
        for i in range(8):
            fills[i] += [e2[2*i], e2[2*i+1]]
            if i >= 1: fills[i] += [a2[2*i-2], a2[2*i-1], c2[i-1]]
        fills[7] += [c2[6] if False else 's_nop 0', a2[14], a2[15], c2[7], 's_nop 1']
        l0, l1 = V_L
        fills[9] += [f'v_mov_b32 v18, {l0}', f'v_mov_b32 v19, {l1}']
        fills[10] += ['s_nop 0', f'v_permlane32_swap_b32 {l0}, v18', f'v_permlane32_swap_b32 {l1}, v19']
        fills[11] += [f'v_add_f32 {l0}, {l0}, v18', f'v_add_f32 {l1}, {l1}, v19']
        fills[12] += [f'v_rcp_f32 v20, {l0}', f'v_rcp_f32 v22, {l1}']
        fills[13] += [f'v_cmp_nge_f32 s[70:71], {l0}, s99', f'v_cmp_nge_f32 s[72:73], {l1}, s99',
                      f'v_cmp_nle_f32 s[74:75], {l0}, s100', f'v_cmp_nle_f32 s[76:77], {l1}, s100']
        fills[14] += ['s_or_b64 s[70:71], s[70:71], s[72:73]', 's_or_b64 s[74:75], s[74:75], s[76:77]',
                      's_or_b64 s[70:71], s[70:71], s[74:75]']
        interleave(p, mf, fills)

    def normalize_o(self):
        p = self.p
        p(f's_lshl_b32 s72, {S_W}, 14')
        p(f'v_add_u32 v24, s72, {V_L16}')
        if X: p(f'v_add_u32 v24, {X}, v24')
        p('s_nop 7')
        for dt in range(4):
            for tt in range(2):
                acc = ACC + (dt * 2 + tt) * 16
                rl = 20 + 2 * tt
                for q in range(0, 16, 2):
                    p(f'v_pk_mul_f32 v[{acc+q}:{acc+q+1}], v[{acc+q}:{acc+q+1}], v[{rl}:{rl+1}] op_sel_hi:[1,0]')
                for u in range(2):
                    for q in range(4):
                        p(f'v_cvt_pk_bf16_f32 v{acc+8*u+q}, v{acc+8*u+2*q}, v{acc+8*u+2*q+1}')
                    f = (dt * 2 + u) * 2 + tt
                    p(f'ds_write_b128 v24, v[{acc+8*u}:{acc+8*u+3}] offset:{f*1024}', tag='ow')

    def o_setup(self):
        L = []
        a = L.append
        a(f's_and_b32 s72, {S_G}, 3')
        a(f's_lshr_b32 s73, s72, 1')
        a(f's_and_b32 s74, s72, 1')
        a(f's_lshr_b32 s75, {S_G}, 2')
        a(f'v_lshrrev_b32 v18, 3, {V_LANE}')
        a(f'v_and_b32 v19, 7, {V_LANE}')
        a(f's_lshl_b32 s76, s73, 2')
        a(f'v_xor_b32 v19, s76, v19')
        a(f'v_lshrrev_b32 v20, 2, v18')
        a(f'v_lshlrev_b32 v20, 3, v20')
        a(f'v_bfe_u32 v21, v18, 1, 1')
        a(f'v_lshl_add_u32 v20, v21, 2, v20')
        a(f'v_and_b32 v21, 1, v18')
        a(f'v_add_u32 v20, v20, v21')
        a(f'v_lshlrev_b32 v20, 10, v20')
        a(f'v_lshl_add_u32 v20, v19, 4, v20')
        a(f's_lshl_b32 s76, {S_G}, 19')
        a(f'v_add_u32 {V_WD[0]}, s76, v20')
        a(f'v_add_u32 {V_WD[1]}, 960, {V_WD[0]}')
        a(f'v_add_u32 {V_WD[2]}, 14208, {V_WD[0]}')
        a(f'v_add_u32 {V_WD[3]}, 15168, {V_WD[0]}')
        a(f's_lshl_b32 s76, s75, 2')
        a(f's_add_u32 s77, s76, {S_W}')
        a(f's_lshl_b32 {S_PB}, s77, 7')
        a(f's_xor_b32 s77, s77, 4')
        a(f's_lshl_b32 {S_PA}, s77, 7')
        a(f's_lshl_b32 s77, s74, 10')
        a(f'v_add_u32 {V_B0}, s77, {V_L16}')
        a(f's_xor_b32 s77, s77, 1024')
        a(f'v_add_u32 {V_B1}, s77, {V_L16}')
        a(f's_lshl_b32 s77, {S_I}, 19')
        a(f's_add_u32 s77, s77, {WS_OP}')
        a(f's_lshl_b32 s78, {S_W}, 11')
        a(f's_add_u32 s77, s77, s78')
        a(f's_lshl_b32 s78, {S_G}, 16')
        a(f's_add_u32 {S_INB}, s77, s78')
        a(f's_lshl_b32 s78, {S_G}, 13')
        a(f's_add_u32 s77, s77, s78')
        for sig in range(4):
            a(f's_xor_b32 s78, s72, {sig}')
            a(f's_add_u32 s79, s78, s76')
            a(f's_xor_b32 s78, s79, 4')
            a(f's_lshl_b32 s78, s78, 16')
            a(f's_add_u32 s{S_D1+sig}, s77, s78')
            if sig:
                a(f's_lshl_b32 s79, s79, 16')
                a(f's_add_u32 s{S_D2+sig-1}, s77, s79')
        return L

    def o_tr_setup(self):
        L = []; a = L.append
        a(f'v_and_b32 v20, 15, {V_LANE}')
        a(f'v_lshrrev_b32 v20, 2, v20')
        a(f'v_lshrrev_b32 v21, 1, v20')
        a(f'v_mul_u32_u24 v21, 1088, v21')
        a(f'v_and_b32 v20, 1, v20')
        a(f'v_lshl_add_u32 v21, v20, 7, v21')
        a(f'v_lshrrev_b32 v20, 5, {V_LANE}')
        a(f'v_lshl_add_u32 v21, v20, 8, v21')
        a(f'v_bfe_u32 v20, {V_LANE}, 4, 1')
        a(f'v_lshl_add_u32 v21, v20, 5, v21')
        a(f'v_and_b32 v20, 1, {V_LANE}')
        a(f'v_lshl_add_u32 v21, v20, 4, v21')
        a(f'v_bfe_u32 v20, {V_LANE}, 1, 1')
        a(f'v_lshl_add_u32 v21, v20, 3, v21')
        a(f'v_add_u32 {V_WT}, {S_RING}, v21')
        return L

    def wo_dma(self, S):
        rnd, st = S // 16, S % 16
        base = S_PA if rnd == 0 else S_PB
        L = [f's_add_u32 m0, {S_RING}, {(S % 4) * WSL}', f's_add_u32 {S_SOFF}, {base}, {st*32*1024}']
        for c in range(4):
            L.append(I(f'buffer_load_dwordx4 {V_WD[c]}, {SRD_WO}, {S_SOFF} offen offset:{c*1088} lds', tag=f'wo{S}'))
        return L

    def ophase(self):
        p = self.p
        AO = 64
        Areg = lambda S, e, a: AO + (S % 2) * 16 + (e * 2 + a) * 4
        def a_reads(S):
            out = []
            for e in range(2):
                for a in range(2):
                    for rd in range(2):
                        b = Areg(S, e, a) + 2 * rd
                        out.append(I(f'ds_read_b64_tr_b16 v[{b}:{b+1}], {V_WT} offset:{(S%4)*WSL + e*2176 + rd*512 + a*64}', tag=f'or{S}'))
            return out
        def b_reads(st):
            out = []
            for e in range(2):
                ksg = 2 * st + e
                for tt in range(2):
                    out.append(I(f'ds_read_b128 {ar((ksg*2+tt)*4)}, {V_B0 if tt == 0 else V_B1} offset:{ksg*2048}', tag=f'or{st}'))
            return out
        p(f'v_mov_b32 v18, 0')
        p('s_cmp_lg_u64 s[70:71], 0')
        p('s_cselect_b32 s72, 1, 0')
        p(f'v_mov_b32 v19, s72')
        p(f's_lshl_b32 s73, {S_W}, 2')
        p(f's_add_u32 s73, s73, {M_FLAG}')
        p(f'v_mov_b32 v18, s73')
        p(f'ds_write_b32 v18, v19', tag='ow')
        p.add(wait_lg('ow'))
        p('s_barrier')
        self.stamp()
        p(f'v_mov_b32 v18, {M_FLAG}')
        p(f'ds_read_b128 v[20:23], v18', tag='flg')
        p.add(wait_vm('wo0'))
        rd0 = b_reads(0) + a_reads(0)
        p.add(rd0)
        p.add(wait_lg('flg'))
        p('v_or3_b32 v20, v20, v21, v22')
        p('v_or_b32 v20, v20, v23')
        p('s_nop 0')
        p('v_readfirstlane_b32 s72, v20')
        p('s_nop 1')
        p('s_cmp_lg_u32 s72, 0')
        p('s_cbranch_scc1 L_FALLBACK')
        p.label('L_FB_DONE')
        for S in range(32):
            rnd, st = S // 16, S % 16
            accb = ACC + rnd * 64
            fills = [[] for _ in range(8)]
            if S + 1 < 32:
                p.add(wait_both((f'wo{S+1}',), (f'or{S}',)))
                rd = (b_reads(st + 1) if (rnd == 0 and st + 1 < 16) else []) + a_reads(S + 1)
                for i, x in enumerate(rd): fills[min(i // 2, 7)].append(x)
            else:
                p.add(wait_lg(f'or{S}'))
            if S + 4 < 32:
                d = self.wo_dma(S + 4)
                fills[3] += d[:2]
                for c in range(4): fills[4 + c].append(d[2 + c])
            if rnd == 1 and 1 <= st <= 4:
                sig = st - 1
                t = ACC + sig * 16
                cv = [f'v_cvt_pk_bf16_f32 v{t+q}, v{t+2*q}, v{t+2*q+1}' for q in range(8)]
                fills[0] += cv[0:2]; fills[1] += cv[2:4]; fills[2] += cv[4:6]; fills[3] += cv[6:8]
                fills[5].append(I(f'buffer_store_dwordx4 {vr(t)}, {V_L16}, {SRD_WS}, s{S_D1+sig} offen sc0 sc1', tag='ost'))
                fills[6].append(I(f'buffer_store_dwordx4 {vr(t+4)}, {V_L16}, {SRD_WS}, s{S_D1+sig} offen offset:1024 sc0 sc1', tag='ost'))
            mf = []
            for e in range(2):
                ksg = 2 * st + e
                for a in range(2):
                    for tt in range(2):
                        d = vr(accb + (a * 2 + tt) * 16, 16)
                        c = '0' if (st == 0 and e == 0) else d
                        mf.append(f'v_mfma_f32_32x32x16_bf16 {d}, {vr(Areg(S, e, a))}, {ar((ksg*2+tt)*4)}, {c}')
            interleave(p, mf, fills)

    def tail(self):
        p = self.p
        self.stamp()
        p('s_nop 9')
        for sig in (1, 2, 3):
            t = ACC + 64 + sig * 16
            for q in range(8):
                p(f'v_cvt_pk_bf16_f32 v{t+q}, v{t+2*q}, v{t+2*q+1}')
            p(f'buffer_store_dwordx4 {vr(t)}, {V_L16}, {SRD_WS}, s{S_D2+sig-1} offen sc0 sc1', tag='ost')
            p(f'buffer_store_dwordx4 {vr(t+4)}, {V_L16}, {SRD_WS}, s{S_D2+sig-1} offen offset:1024 sc0 sc1', tag='ost')
        p(f"""
s_and_b32 s72, {S_G}, 1
s_lshl_b32 s72, s72, 5
s_add_u32 s72, s72, {S_T0}
s_lshl_b32 s72, s72, 10
s_bfe_u32 s73, {S_G}, 0x10001
s_lshl_b32 s73, s73, 6
s_add_u32 s73, s73, {S_PB}
s_add_u32 {S_XO}, s72, s73
v_and_b32 v18, 31, {V_LANE}
v_lshlrev_b32 v18, 10, v18
v_lshrrev_b32 v19, 5, {V_LANE}
v_lshl_add_u32 {V_XO}, v19, 4, v18
""")
        p(f'buffer_load_dwordx4 v[64:67], {V_XO}, {SRD_X}, {S_XO} offen', tag='xo')
        p(f'buffer_load_dwordx4 v[68:71], {V_XO}, {SRD_X}, {S_XO} offen offset:32', tag='xo')
        p(f"""
s_lshl_b32 s72, {S_I}, 10
s_lshl_b32 s73, {S_W}, 5
s_add_u32 s72, s72, s73
s_add_u32 s72, s72, {WS_OF}
s_lshl_b32 s73, {S_G}, 2
s_add_u32 s74, s72, s73
v_lshlrev_b32 v18, 7, {V_LANE}
v_mov_b32 v19, {S_NONCE}
s_lshl_b32 s73, {S_G}, 7
s_add_u32 s75, s72, s73
v_lshlrev_b32 v20, 2, {V_LANE}
""")
        p.add(wait_vm('ost'))
        p(f'v_cmp_gt_u32 vcc, 8, {V_LANE}')
        p('s_and_saveexec_b64 s[76:77], vcc')
        p(f'buffer_store_dword v19, v18, {SRD_WS}, s74 offen sc0 sc1', tag='flagst')
        p('s_mov_b64 exec, s[76:77]')
        self.stamp()
        self.epi_gate()
        self.stamp()
        p.label('L_POLL')
        p(f'v_cmp_gt_u32 vcc, 8, {V_LANE}')
        p('s_and_saveexec_b64 s[76:77], vcc')
        p(f'buffer_load_dword v21, v20, {SRD_WS}, s75 offen sc0 sc1', tag='poll')
        p.add(I('s_waitcnt vmcnt(0)'))
        p(f'v_cmp_ne_u32 vcc, {S_NONCE}, v21')
        p('s_mov_b64 exec, s[76:77]')
        p('s_nop 0')
        p('s_cbranch_vccnz L_POLL')
        self.stamp()
        for k in range(1, 8):
            p(f's_add_u32 s72, {S_G}, {k}')
            p('s_and_b32 s72, s72, 7')
            p('s_lshl_b32 s72, s72, 13')
            p(f's_add_u32 s72, s72, {S_INB}')
            b = 128 + (k - 1) * 8
            p(f'buffer_load_dwordx4 {vr(b)}, {V_L16}, {SRD_WS}, s72 offen sc0 sc1', tag=f'in{k}')
            p(f'buffer_load_dwordx4 {vr(b+4)}, {V_L16}, {SRD_WS}, s72 offen offset:1024 sc0 sc1', tag=f'in{k}')
        p('s_mov_b32 s72, 0x00003f80')
        p('s_mov_b32 s73, 0x3f800000')
        own = ACC + 64
        for k in range(1, 8):
            b = 128 + (k - 1) * 8
            p.add(wait_vm(f'in{k}'))
            for q in range(8):
                p(f'v_dot2_f32_bf16 v{own+2*q}, v{b+q}, s72, v{own+2*q}')
                p(f'v_dot2_f32_bf16 v{own+2*q+1}, v{b+q}, s73, v{own+2*q+1}')
        p('s_nop 2')
        for q in range(8):
            a0, a1 = own + 2 * q, own + 2 * q + 1
            g0, g1 = 96 + 2 * q, 97 + 2 * q
            x0, x1 = 112 + 2 * q, 113 + 2 * q
            p(f"""
v_cvt_pk_bf16_f32 v18, v{a0}, v{a1}
v_lshlrev_b32 v20, 16, v18
v_and_b32 v21, {S_HMASK}, v18
v_mul_f32 v20, v20, v{g0}
v_mul_f32 v21, v21, v{g1}
v_cvt_pk_bf16_f32 v18, v20, v21
v_lshlrev_b32 v20, 16, v18
v_and_b32 v21, {S_HMASK}, v18
v_add_f32 v20, v20, v{x0}
v_add_f32 v21, v21, v{x1}
v_cvt_pk_bf16_f32 v{72+q}, v20, v21
""")
        p(f'buffer_store_dwordx4 v[72:75], {V_XO}, {SRD_OUT}, {S_XO} offen', tag='out')
        p(f'buffer_store_dwordx4 v[76:79], {V_XO}, {SRD_OUT}, {S_XO} offen offset:32', tag='out')
        self.stamp()

    def epi_gate(self):
        p = self.p
        p(f"""
v_mov_b32 v22, {V_MB}
v_mov_b32 v23, {V_SD}
v_mov_b32 v24, {V_MB}
v_mov_b32 v25, {V_SD}
s_and_b32 s72, {S_G}, 1
s_cmp_eq_u32 s72, 0
v_permlane32_swap_b32 v22, v24
v_permlane32_swap_b32 v23, v25
s_cbranch_scc1 L_TT0
v_mov_b32 v22, v24
v_mov_b32 v23, v25
""")
        p.label('L_TT0')
        p('v_rcp_f32 v24, v23')
        p.add(wait_vm('xo'))
        for q in range(8):
            x0, x1 = 112 + 2 * q, 113 + 2 * q
            p(f"""
v_lshlrev_b32 v{x0}, 16, v{64+q}
v_and_b32 v{x1}, {S_HMASK}, v{64+q}
v_sub_f32 v26, v{x0}, v22
v_sub_f32 v27, v{x1}, v22
v_cvt_pk_bf16_f32 v28, v26, v27
v_lshlrev_b32 v26, 16, v28
v_and_b32 v27, {S_HMASK}, v28
v_mul_f32 v28, v26, v24
v_mul_f32 v29, v27, v24
v_fma_f32 v30, -v28, v23, v26
v_fma_f32 v31, -v29, v23, v27
v_fma_f32 v28, v30, v24, v28
v_fma_f32 v29, v31, v24, v29
v_cvt_pk_bf16_f32 v28, v28, v29
v_lshlrev_b32 v{96+2*q}, 16, v28
v_and_b32 v{97+2*q}, {S_HMASK}, v28
""")
        if self.moe: self.moe_apply()
        for q in range(16):
            b = 96 + q
            p(f"""
v_mul_f32 v26, {f32hex(-math.log2(math.e))}, v{b}
v_exp_f32 v26, v26
s_nop 0
v_add_f32 v26, 1.0, v26
v_rcp_f32 v26, v26
s_nop 0
v_mul_f32 v{b}, v{b}, v26
""")
        for q in range(8):
            p(f"""
v_cvt_pk_bf16_f32 v26, v{96+2*q}, v{97+2*q}
v_lshlrev_b32 v{96+2*q}, 16, v26
v_and_b32 v{97+2*q}, {S_HMASK}, v26
""")


    def fallback(self):
        p = self.p
        p.add(raw('; ---- safe-softmax fallback ----'))
        p.label('L_FALLBACK')
        p('s_branch L_FB_DONE')

    def wave_reduce(self, op, v):
        L = []
        for m in ('row_shr:1', 'row_shr:2', 'row_shr:4', 'row_shr:8'):
            L.append('s_nop 1'); L.append(f'{op}_dpp {v}, {v}, {v} {m} row_mask:0xf bank_mask:0xf bound_ctrl:0')
        L.append('s_nop 1'); L.append(f'{op}_dpp {v}, {v}, {v} row_bcast:15 row_mask:0xa bank_mask:0xf')
        L.append('s_nop 1'); L.append(f'{op}_dpp {v}, {v}, {v} row_bcast:31 row_mask:0xc bank_mask:0xf')
        return L

    def router(self):
        p = self.p
        p.add(wait_vm('rx'))
        for q in range(4): p(f'v_accvgpr_read_b32 v{20+q}, a{176+q}')
        for z in range(2):
            xb = 36 + 4 * z
            p(f's_add_u32 s72, s95, {z}')
            p(f'v_readlane_b32 s70, {V_MB}, s72')
            p(f'v_readlane_b32 s71, {V_SD}, s72')
            p('s_nop 1')
            p('v_mov_b32 v24, s71')
            p('v_rcp_f32 v25, v24')
            p('v_mov_b32 v18, 0')
            for q in range(4):
                p(f"""
v_lshlrev_b32 v26, 16, v{xb+q}
v_and_b32 v27, {S_HMASK}, v{xb+q}
v_subrev_f32 v26, s70, v26
v_subrev_f32 v27, s70, v27
v_cvt_pk_bf16_f32 v28, v26, v27
v_lshlrev_b32 v26, 16, v28
v_and_b32 v27, {S_HMASK}, v28
v_mul_f32 v28, v26, v25
v_mul_f32 v29, v27, v25
v_fma_f32 v30, -v28, v24, v26
v_fma_f32 v31, -v29, v24, v27
v_fma_f32 v28, v30, v25, v28
v_fma_f32 v29, v31, v25, v29
v_cvt_pk_bf16_f32 v{xb+q}, v28, v29
""")
            for q in range(4):
                p(f'v_dot2_f32_bf16 v18, v{xb+q}, v{20+q}, v18')
            p(f's_add_u32 s72, s72, {S_T0}')
            p('s_lshl_b32 s73, s72, 10')
            p(f's_add_u32 s73, s73, {WS_XN}')
            p(f'buffer_store_dwordx4 {vr(xb)}, {V_L16}, {SRD_WS}, s73 offen sc0 sc1', tag='xnst')
            p('s_nop 0')
            p.add(self.wave_reduce('v_add_f32', 'v18'))
            p('v_cvt_pk_bf16_f32 v18, v18, v18')
            p('s_nop 0')
            p('v_readlane_b32 s73, v18, 63')
            p('s_nop 1')
            p(f"""
s_and_b32 s73, s73, 0xffff0000
s_ashr_i32 s74, s73, 31
s_or_b32 s74, s74, 0x80000000
s_xor_b32 s73, s73, s74
s_and_b32 s73, s73, 0xffff0000
s_sub_u32 s74, 2047, s72
s_or_b32 s{48+z}, s73, s74
""")

    def granule_store(self):
        return [f'v_mov_b32 v36, s48', f'v_mov_b32 v37, {S_NONCE}', f'v_mov_b32 v38, s49', f'v_mov_b32 v39, {S_NONCE}',
                f's_add_u32 s72, s95, {S_T0}', 's_lshl_b32 s72, s72, 3', f's_add_u32 s72, s72, {WS_R}',
                wait_vm('xnst'),
                I(f'buffer_store_dwordx4 v[36:39], {V_L0}, {SRD_WS}, s72 offen sc0 sc1', tag='gran')]

    def r_loads(self):
        L = [f's_lshl_b32 s72, {S_W}, 12', f's_add_u32 s72, s72, {WS_R}', f'v_lshlrev_b32 v18, 6, {V_LANE}']
        for q in range(4):
            L.append(I(f'buffer_load_dwordx4 {ar(160+4*q)}, v18, {SRD_WS}, s72 offen offset:{16*q} sc0 sc1', tag='rgr'))
        return L

    def top8(self, sd):
        p = self.p
        k = lambda i: sd + i
        p.label('L_RRETRY')
        p.add(I('s_waitcnt vmcnt(0)'))
        bad = []
        for i in range(8):
            p(f'v_accvgpr_read_b32 v{k(i)}, a{160+2*i}')
            p(f'v_accvgpr_read_b32 v{k(8+i)}, a{161+2*i}')
        p(f'v_xor_b32 v18, {S_NONCE}, v{k(8)}')
        for i in range(1, 8):
            p(f'v_xor_b32 v19, {S_NONCE}, v{k(8+i)}')
            p('v_or_b32 v18, v18, v19')
        p('v_cmp_ne_u32 vcc, 0, v18')
        p('s_cbranch_vccz L_ROK')
        p.opt = 'retry'
        for x in self.r_loads():
            x = I(x.text, tag='rgr2') if isinstance(x, I) else x
            p.add(x)
        p('s_branch L_RRETRY')
        p.opt = None
        p.label('L_ROK')
        net = [(0,1),(2,3),(4,5),(6,7),(0,2),(1,3),(4,6),(5,7),(1,2),(5,6),(0,4),(1,5),(2,6),(3,7),(2,4),(3,5),(1,2),(3,4),(5,6)]
        for a, b in net:
            p(f'v_max_u32 v18, v{k(a)}, v{k(b)}')
            p(f'v_min_u32 v{k(b)}, v{k(a)}, v{k(b)}')
            p(f'v_mov_b32 v{k(a)}, v18')
        p('v_mov_b32 v19, 0')
        for rnd in range(8):
            p(f'v_mov_b32 v18, v{k(0)}')
            p.add(self.wave_reduce('v_max_u32', 'v18'))
            p('s_nop 0')
            p('v_readlane_b32 s72, v18, 63')
            p('s_nop 1')
            p(f'v_cmp_eq_u32 vcc, s72, v{k(0)}')
            p(f'v_writelane_b32 v19, s72, {rnd}')
            p('s_nop 0')
            for i in range(7 - rnd):
                p(f'v_cndmask_b32 v{k(i)}, v{k(i)}, v{k(i+1)}, vcc')
        p(f"""
s_lshl_b32 s72, {S_W}, 5
s_add_u32 s72, s72, {M_TOP}
v_lshlrev_b32 v18, 2, {V_LANE}
v_add_u32 v20, s72, v18
v_cmp_gt_u32 vcc, 8, {V_LANE}
s_and_saveexec_b64 s[76:77], vcc
""")
        p('ds_write_b32 v20, v19', tag='tw')
        p('s_mov_b64 exec, s[76:77]')
        p.add(wait_lg('tw'))
        p('s_barrier')
        p(f'v_and_b32 v21, 31, {V_LANE}')
        p('v_lshlrev_b32 v21, 2, v21')
        p(f'v_add_u32 v21, {M_TOP}, v21')
        p('ds_read_b32 v22, v21', tag='tr')
        p(f'v_mov_b32 v23, {M_TOP}')
        for q in range(8):
            p(f'ds_read_b128 {vr(k(4*q))}, v23 offset:{16*q}', tag='tr')
        p.add(wait_lg('tr'))
        p('v_mov_b32 v24, 0')
        for i in range(32):
            pr = 70 + 2 * (i % 4)
            p(f'v_cmp_gt_u32 s[{pr}:{pr+1}], v{k(i)}, v22')
            if i >= 2:
                q = 70 + 2 * ((i - 2) % 4)
                p(f'v_addc_co_u32 v24, s[78:79], v24, 0, s[{q}:{q+1}]')
        for i in (30, 31):
            q = 70 + 2 * (i % 4)
            p('s_nop 0')
            p(f'v_addc_co_u32 v24, s[78:79], v24, 0, s[{q}:{q+1}]')
        p(f'v_cmp_gt_u32 s[70:71], 8, v24')
        p(f'v_cmp_gt_u32 vcc, 32, {V_LANE}')
        p('v_lshlrev_b32 v24, 2, v24')
        p('s_and_b64 vcc, vcc, s[70:71]')
        p(f's_lshl_b32 s72, {S_W}, 5')
        p(f's_add_u32 s72, s72, {M_TOP + 128}')
        p('v_add_u32 v24, s72, v24')
        p('s_and_saveexec_b64 s[76:77], vcc')
        p('ds_write_b32 v24, v22', tag='tw2')
        p('s_mov_b64 exec, s[76:77]')
        p(f'v_and_b32 v21, 7, {V_LANE}')
        p('v_lshlrev_b32 v21, 2, v21')
        p('v_add_u32 v21, s72, v21')
        p.add(wait_lg('tw2'))
        p(f'ds_read_b32 {V_TOP}, v21', tag='tr2')
        p.add(wait_lg('tr2'))

    def acu_begin(self, name):
        p = self.p
        p(f's_lshr_b32 s72, s2, 3')
        p('s_cmp_ge_u32 s72, 14')
        p(f's_cbranch_scc1 {name}')
        p.opt = 'acu'
    def acu_end(self, name):
        self.p.opt = None
        self.p.label(name)

    def ffn_dma(self):
        p = self.p
        self.acu_begin('L_FD_SKIP')
        p(f"""
s_and_b32 s73, s2, 7
s_mul_i32 s73, s73, 14
s_add_u32 {S_FB}, s73, s72
""")
        srd(p, 36, 58, 512 * 1792 * 2)
        srd(p, 40, 60, 512 * 1792 * 2)
        p(f"""
v_lshrrev_b32 v18, 1, {V_LANE}
v_mul_u32_u24 v18, 3584, v18
v_and_b32 v19, 1, {V_LANE}
v_lshl_add_u32 v18, v19, 4, v18
s_lshl_b32 s73, {S_FB}, 5
v_add_u32 v18, s73, v18
s_mul_i32 s74, {S_W}, {4*32*3584}
s_lshl_b32 s75, {S_W}, 12
""")
        for c in range(4):
            p(f's_add_u32 m0, s75, {FG + c*1024}')
            p(f's_add_u32 s76, s74, {c*32*3584}')
            p(f'buffer_load_dwordx4 v18, {SRD_AUX}, s76 offen lds', tag='fw')
            p(f's_add_u32 m0, s75, {FU + c*1024}')
            p('s_nop 0')
            p(f'buffer_load_dwordx4 v18, {SRD_AUX2}, s76 offen lds', tag='fw')
        srd(p, 36, 62, 1792 * 512 * 2)
        p(f"""
v_lshrrev_b32 v18, 4, {V_LANE}
v_lshlrev_b32 v18, 12, v18
v_and_b32 v19, 15, {V_LANE}
v_lshl_add_u32 v18, v19, 4, v18
s_lshl_b32 s73, {S_FB}, 14
s_lshl_b32 s74, {S_W}, 8
s_add_u32 s73, s73, s74
s_mul_i32 s75, {S_W}, 4352
""")
        for r in range(4):
            p(f's_add_u32 m0, s75, {FD + r*1088}')
            p(f's_add_u32 s76, s73, {r*1024}')
            p(f'buffer_load_dwordx4 v18, {SRD_AUX}, s76 offen lds', tag='fw')
        self.acu_end('L_FD_SKIP')

    def ffn_xn_loads(self):
        p = self.p
        self.acu_begin('L_FX_SKIP')
        p(f"""
v_and_b32 v18, 7, {V_LANE}
v_lshlrev_b32 v18, 2, v18
""")
        p(f'ds_bpermute_b32 v19, v18, {V_TOP}', tag='fbp')
        p.add(wait_lg('fbp'))
        p(f"""
v_and_b32 v19, 0x7ff, v19
v_sub_u32 v19, 2047, v19
v_lshlrev_b32 v19, 10, v19
v_lshrrev_b32 v20, 5, {V_LANE}
v_lshl_add_u32 v19, v20, 4, v19
s_lshl_b32 s73, {S_W}, 8
s_add_u32 s73, s73, {WS_XN}
""")
        for ks in range(8):
            p(f'buffer_load_dwordx4 {ar(128+4*ks)}, v19, {SRD_WS}, s73 offen offset:{32*ks} sc0 sc1', tag='fx')
        self.acu_end('L_FX_SKIP')

    def ffn_compute(self, sd):
        p = self.p
        self.acu_begin('L_FC_SKIP')
        acc = sd; af = sd + 16
        p(f"""
v_and_b32 v18, 15, {V_LANE}
v_lshrrev_b32 v18, 2, v18
v_lshrrev_b32 v19, 5, {V_LANE}
v_lshl_add_u32 v18, v19, 3, v18
v_lshlrev_b32 v18, 5, v18
v_and_b32 v19, 3, {V_LANE}
v_lshl_add_u32 v18, v19, 3, v18
v_bfe_u32 v19, {V_LANE}, 4, 1
v_mul_u32_u24 v19, {FU-FG}, v19
s_lshl_b32 s73, {S_W}, 12
s_add_u32 s73, s73, {FG}
v_add3_u32 v18, v18, v19, s73
""")
        p.add(wait_vm('fw', 'fx'))
        for b in range(2):
            for z in range(4):
                ks = 4 * b + z
                for rd in range(2):
                    p(f'ds_read_b64_tr_b16 v[{af+4*z+2*rd}:{af+4*z+2*rd+1}], v18 offset:{ks*512 + rd*128}', tag='fr')
            p.add(wait_lg('fr'))
            for z in range(4):
                ks = 4 * b + z
                p(f'v_mfma_f32_32x32x16_bf16 {vr(acc,16)}, {vr(af+4*z)}, {ar(128+4*ks)}, {"0" if ks == 0 else vr(acc,16)}')
        p(f's_mul_i32 s73, {S_W}, 4352')
        p(f's_add_u32 s73, s73, {FD}')
        p(f'v_add_u32 v19, s73, {V_VT}')
        p(f's_lshl_b32 s73, {S_W}, 12')
        p(f's_add_u32 s73, s73, {FP}')
        p(f'v_add_u32 v20, s73, {V_L16}')
        p(f'v_add_u32 v21, {FP}, {V_L16}')
        p('s_nop 7')
        for q in range(4):
            p(f'ds_write_b128 v20, {vr(acc+4*q)} offset:{q*1024}', tag='fpw')
        p.add(wait_lg('fpw'))
        p('s_barrier')
        for q in range(4):
            p(f'ds_read_b128 {vr(acc+4*q)}, v21 offset:{q*1024}', tag='fpr')
        for w in range(1, 4):
            for q in range(4):
                p(f'ds_read_b128 {vr(af+4*q)}, v21 offset:{w*4096 + q*1024}', tag='fpr')
            p.add(wait_lg('fpr'))
            for r in range(16):
                p(f'v_add_f32 v{acc+r}, v{acc+r}, v{af+r}')
        for a in range(4):
            for rd in range(2):
                p(f'ds_read_b64_tr_b16 v[{af+4*a+2*rd}:{af+4*a+2*rd+1}], v19 offset:{rd*512 + a*64}', tag='fdr')
        for q in range(4):
            g0, g1, u0, u1 = acc + 2*q, acc + 2*q + 1, acc + 8 + 2*q, acc + 9 + 2*q
            p(f"""
v_cvt_pk_bf16_f32 v22, v{g0}, v{g1}
v_cvt_pk_bf16_f32 v23, v{u0}, v{u1}
v_lshlrev_b32 v24, 16, v22
v_and_b32 v25, {S_HMASK}, v22
v_mul_f32 v26, {f32hex(-math.log2(math.e))}, v24
v_mul_f32 v27, {f32hex(-math.log2(math.e))}, v25
v_exp_f32 v26, v26
v_exp_f32 v27, v27
s_nop 0
v_add_f32 v26, 1.0, v26
v_add_f32 v27, 1.0, v27
v_rcp_f32 v26, v26
v_rcp_f32 v27, v27
s_nop 0
v_mul_f32 v24, v24, v26
v_mul_f32 v25, v25, v27
v_cvt_pk_bf16_f32 v22, v24, v25
v_lshlrev_b32 v24, 16, v22
v_and_b32 v25, {S_HMASK}, v22
v_lshlrev_b32 v26, 16, v23
v_and_b32 v27, {S_HMASK}, v23
v_mul_f32 v24, v24, v26
v_mul_f32 v25, v25, v27
v_cvt_pk_bf16_f32 v{28+q}, v24, v25
""")
        p.add(wait_lg('fdr'))
        p('s_nop 0')
        for a in range(4):
            p(f'v_mfma_f32_32x32x16_bf16 {ar(128+16*a,16)}, {vr(af+4*a)}, v[28:31], 0')
        p(f"""
v_and_b32 v18, 31, {V_LANE}
v_lshlrev_b32 v19, 11, v18
v_lshrrev_b32 v20, 5, {V_LANE}
v_lshl_add_u32 v19, v20, 4, v19
v_cmp_gt_u32 vcc, 8, v18
v_mov_b32 v20, 0x40000000
s_lshl_b32 s73, {S_FB}, 14
v_cndmask_b32 v19, v20, v19, vcc
s_lshl_b32 s74, {S_W}, 9
s_add_u32 s73, s73, s74
s_add_u32 s73, s73, {WS_YP}
s_nop 4
""")
        for a in range(4):
            for q in range(4):
                p(f'buffer_store_dwordx4 {ar(128+16*a+4*q)}, v19, {SRD_WS}, s73 offen offset:{a*128 + q*32} sc0 sc1', tag='yst')
        self.acu_end('L_FC_SKIP')

    def ffn_flag(self):
        p = self.p
        p(f's_lshr_b32 s72, s2, 3')
        p('s_cmp_ge_u32 s72, 14')
        p('s_cbranch_scc1 L_FF_SKIP')
        p(f's_cmp_lg_u32 {S_W}, 0')
        p('s_cbranch_scc1 L_FF_SKIP')
        p.opt = 'acu'
        p(f's_lshl_b32 s73, {S_FB}, 2')
        p(f's_add_u32 s73, s73, {WS_YF}')
        p(f'v_mov_b32 v18, {S_NONCE}')
        p(f'buffer_store_dword v18, {V_L0}, {SRD_WS}, s73 offen sc0 sc1', tag='yfl')
        p.opt = None
        p.label('L_FF_SKIP')

    def moe_apply(self):
        p = self.p
        p(f"""
v_and_b32 v26, 0x7ff, {V_TOP}
v_sub_u32 v26, 2047, v26
s_and_b32 s72, {S_G}, 1
s_lshl_b32 s72, s72, 5
s_add_u32 s72, s72, {S_T0}
v_subrev_u32 v26, s72, v26
v_cmp_gt_u32 s[70:71], 32, v26
s_nop 1
s_and_b32 s50, s70, 0xff
s_cmp_eq_u32 s50, 0
s_cbranch_scc1 L_MOE_DONE
""")
        p.opt = 'sel'
        p.label('L_YPOLL')
        p(f'v_lshlrev_b32 v27, 2, {V_LANE}')
        p(f's_mov_b32 s51, {WS_YF}')
        p(f'buffer_load_dword v28, v27, {SRD_WS}, s51 offen sc0 sc1', tag='yp')
        p(f'v_min_u32 v29, 47, {V_LANE}')
        p('v_lshlrev_b32 v29, 2, v29')
        p(f'buffer_load_dword v29, v29, {SRD_WS}, s51 offen offset:256 sc0 sc1', tag='yp')
        p.add(I('s_waitcnt vmcnt(0)'))
        p(f'v_xor_b32 v28, {S_NONCE}, v28')
        p(f'v_xor_b32 v29, {S_NONCE}, v29')
        p('v_or_b32 v28, v28, v29')
        p('v_cmp_ne_u32 vcc, 0, v28')
        p('s_cbranch_vccnz L_YPOLL')
        p.label('L_SELLOOP')
        p('s_ff1_i32_b32 s52, s50')
        p('s_bitset0_b32 s50, s52')
        p('v_readlane_b32 s53, v26, s52')
        p(f'v_readlane_b32 s54, {V_TOP}, s52')
        p(f"""
v_lshrrev_b32 v27, 3, {V_LANE}
v_lshlrev_b32 v27, 14, v27
v_and_b32 v28, 7, {V_LANE}
v_lshl_add_u32 v27, v28, 4, v27
s_bfe_u32 s73, {S_G}, 0x10001
s_lshl_b32 s73, s73, 6
s_add_u32 s73, s73, {S_PB}
s_lshl_b32 s73, s73, 1
s_lshl_b32 s74, s52, 11
s_add_u32 s73, s73, s74
s_add_u32 s73, s73, {WS_YP}
""")
        for it in range(14):
            p(f's_add_u32 s74, s73, {it*8*16384}')
            p(f'buffer_load_dwordx4 {vr(128+4*it)}, v27, {SRD_WS}, s74 offen sc0 sc1', tag='yl')
        p.add(I('s_waitcnt vmcnt(0)'))
        for it in range(1, 14):
            for e in range(4):
                p(f'v_add_f32 v{128+e}, v{128+e}, v{128+4*it+e}')
        p('s_nop 1')
        for e in range(4):
            p(f'v_add_f32_dpp v{128+e}, v{128+e}, v{128+e} row_ror:8 row_mask:0xf bank_mask:0xf')
        for e in range(4): p(f'v_mov_b32 v{132+e}, v{128+e}')
        p('s_nop 1')
        for e in range(4): p(f'v_permlane16_swap_b32 v{128+e}, v{132+e}')
        p('s_nop 0')
        for e in range(4): p(f'v_add_f32 v{128+e}, v{128+e}, v{132+e}')
        for e in range(4): p(f'v_mov_b32 v{132+e}, v{128+e}')
        p('s_nop 1')
        for e in range(4): p(f'v_permlane32_swap_b32 v{128+e}, v{132+e}')
        p('s_nop 0')
        for e in range(4): p(f'v_add_f32 v{128+e}, v{128+e}, v{132+e}')
        p(f"""
s_and_b32 s54, s54, 0xffff0000
s_ashr_i32 s74, s54, 31
s_not_b32 s74, s74
s_or_b32 s74, s74, 0x80000000
s_xor_b32 s54, s54, s74
s_and_b32 s54, s54, 0xffff0000
v_mov_b32 v28, s54
v_mul_f32 v28, {f32hex(-math.log2(math.e))}, v28
v_exp_f32 v28, v28
s_nop 0
v_add_f32 v28, 1.0, v28
v_rcp_f32 v28, v28
s_nop 0
v_cvt_pk_bf16_f32 v28, v28, v28
v_and_b32 v28, {S_HMASK}, v28
v_cvt_pk_bf16_f32 v132, v128, v129
v_cvt_pk_bf16_f32 v133, v130, v131
v_lshlrev_b32 v128, 16, v132
v_and_b32 v129, {S_HMASK}, v132
v_lshlrev_b32 v130, 16, v133
v_and_b32 v131, {S_HMASK}, v133
v_mul_f32 v128, v128, v28
v_mul_f32 v129, v129, v28
v_mul_f32 v130, v130, v28
v_mul_f32 v131, v131, v28
v_cvt_pk_bf16_f32 v132, v128, v129
v_cvt_pk_bf16_f32 v133, v130, v131
v_lshlrev_b32 v128, 16, v132
v_and_b32 v129, {S_HMASK}, v132
v_lshlrev_b32 v130, 16, v133
v_and_b32 v131, {S_HMASK}, v133
s_lshl_b32 s74, {S_W}, 7
s_add_u32 s74, s74, {M_FFN}
v_and_b32 v28, 7, {V_LANE}
v_lshlrev_b32 v28, 4, v28
v_add_u32 v28, s74, v28
""")
        p('ds_write_b128 v28, v[128:131]', tag='yw')
        p(f'v_lshrrev_b32 v29, 5, {V_LANE}')
        p('v_lshlrev_b32 v29, 5, v29')
        p('v_add_u32 v29, s74, v29')
        p.add(wait_lg('yw'))
        p('ds_read_b128 v[132:135], v29', tag='yr')
        p('ds_read_b128 v[136:139], v29 offset:16', tag='yr')
        p('ds_read_b128 v[140:143], v29 offset:64', tag='yr')
        p('ds_read_b128 v[144:147], v29 offset:80', tag='yr')
        p(f'v_and_b32 v28, 31, {V_LANE}')
        p('v_cmp_eq_u32 vcc, s53, v28')
        p.add(wait_lg('yr'))
        for q in range(8):
            p(f"""
v_add_f32 v128, v{96+2*q}, v{132+2*q}
v_add_f32 v129, v{97+2*q}, v{133+2*q}
v_cvt_pk_bf16_f32 v128, v128, v129
v_lshlrev_b32 v129, 16, v128
v_and_b32 v128, {S_HMASK}, v128
v_cndmask_b32 v{96+2*q}, v{96+2*q}, v129, vcc
v_cndmask_b32 v{97+2*q}, v{97+2*q}, v128, vcc
""")
        p('s_cmp_lg_u32 s50, 0')
        p('s_cbranch_scc1 L_SELLOOP')
        p.opt = None
        p.label('L_MOE_DONE')

    def dump_regs(self, kind, base, n, off0=0):
        p = self.p
        p(f'''
s_lshl_b32 s72, s2, 2
s_add_u32 s72, s72, {S_W}
s_mul_i32 s72, s72, {256*256}
s_add_u32 s72, s72, {WS_DBG + off0*256}
v_lshlrev_b32 v18, 2, {V_LANE}
''')
        for r in range(n):
            p(f's_add_u32 s73, s72, {r*256}')
            p(f'buffer_store_dword {kind}{base+r}, v18, {SRD_WS}, s73 offen', tag='dbg')
        p.add(wait_vm('ALL'))

    def nonce_get(self):
        p = self.p
        p.label('L_NONCE')
        p.add(wait_vm('nonce'))
        p('v_readfirstlane_b32 ' + S_NONCE + ', v47')
        p('s_nop 1')
        p(f's_cmp_lg_u32 {S_NONCE}, 0')
        p('s_cbranch_scc1 L_NONCE_OK')
        p.opt = 'retry'
        p('v_mov_b32 v47, 0')
        p(f'buffer_load_dword v47, v47, {SRD_AUX2}, 0 offen sc0 sc1', tag='nonce2')
        p.add(I('s_waitcnt vmcnt(0)'))
        p('s_branch L_NONCE')
        p.opt = None
        p.label('L_NONCE_OK')

    def finish_with(self, extra):
        self.finish(extra)

    def finish(self, extra=None):
        p = self.p
        if self.timing:
            p(f'''
s_lshl_b32 s72, s2, 2
s_add_u32 s72, s72, {S_W}
s_lshl_b32 s72, s72, 8
s_add_u32 s72, s72, {WS_DBG + 0x8000000}
v_lshlrev_b32 v18, 2, {V_LANE}
''')
            p(f'buffer_store_dword v45, v18, {SRD_WS}, s72 offen', tag='dbg')
        p.add(wait_vm('ALL'))
        p.label('L_END')
        p('s_endpgm')
        if extra: extra()
        p.label('L_CODE_END')

CODE_BACK = 0
CODE_KB = 32

import os
_HDR = open(os.path.join(os.path.dirname(os.path.abspath(__file__)), 'header.txt')).read()
HEADER = _HDR + f'''; Fused single launch: LN -> Q proj -> GQA attention (512-key window) -> O proj (8-way exchange) + top-8 MoE gate.
; @launch grid=(256,1,1) block=(256,1,1) lds={LDS_TOTAL}
.amdgcn_target "amdgcn-amd-amdhsa--gfx950"
.text
.globl {KN}
.p2align 8
.type {KN},@function
{KN}:
'''
FOOTER = f'''
.section .rodata,"a"
.p2align 6
.amdhsa_kernel {KN}
  .amdhsa_next_free_vgpr 512
  .amdhsa_next_free_sgpr 102
  .amdhsa_accum_offset 256
  .amdhsa_group_segment_fixed_size 0
  .amdhsa_kernarg_size 104
  .amdhsa_user_sgpr_count 2
  .amdhsa_user_sgpr_kernarg_segment_ptr 1
  .amdhsa_system_sgpr_workgroup_id_x 1
.end_amdhsa_kernel
'''
def emit(g, path):
    items = resolve(g.p.l)
    errs = check(items, 'all', skip_opt={'retry'}) + check(items, 'noopt', skip_opt={'nonce', 'acu', 'sel', 'retry'})
    for e in errs[:40]: print('HAZARD', e)
    txt = HEADER + render(items) + FOOTER
    open(path, 'w').write(txt)
    n = sum(1 for it in items if it.kind == 'i')
    print(f'{path}: {n} instructions, {len(errs)} hazard reports')
    return errs

def qconv_simple(g):
    p = g.p
    p('s_nop 15')
    for dt in range(4):
        for tt in range(2):
            acc = ACC + (dt * 2 + tt) * 16
            for u in range(2):
                ks = 2 * dt + u
                for q in range(4):
                    p(f'v_cvt_pk_bf16_f32 v18, v{acc+8*u+2*q}, v{acc+8*u+2*q+1}')
                    p(f'v_accvgpr_write_b32 a{A_Q + (ks*2+tt)*4 + q}, v18')

if __name__ == '__main__':
    mode = sys.argv[1]; out = sys.argv[2]
    if mode == 'qtest':
        g = Gen()
        g.prologue(); g.stats(); g.qphase(); qconv_simple(g)
        g.dump_regs('a', A_Q, 64)
        g.p('v_mov_b32 v20, v16'); g.p('v_mov_b32 v21, v17')
        g.dump_regs('v', 16, 2, off0=64)
        g.finish()
        emit(g, out)

    if mode == 'otest':
        g = Gen()
        g.prologue(); g.stats(); g.qphase(); g.transition_qa(); g.attention(); g.normalize_o()
        g.p.add(wait_lg('ow'))
        g.dump_regs('v', ACC, 128)
        g.dump_regs('v', 46, 2, off0=128)
        g.finish()
        emit(g, out)

    if mode in ('full0', 'full0t'):
        g = Gen(timing=(mode == 'full0t'))
        g.prologue(); g.stats(); g.nonce_get(); g.qphase(); g.transition_qa(); g.attention(); g.normalize_o()
        g.ophase(); g.tail(); g.finish_with(g.fallback)
        emit(g, out)

    if mode in ('full1', 'full1t'):
        g = Gen(timing=(mode == 'full1t'))
        g.moe = True
        def h0(): g.p.add(g.r_loads()); g.ffn_dma()
        def h2(): g.top8(SB); g.ffn_xn_loads()
        def h4(): g.ffn_compute(SB)
        def h6(): g.ffn_flag()
        g.iter_hooks = {0: [h0], 2: [h2], 4: [h4], 6: [h6]}
        g.prologue(); g.stats(); g.router(); g.nonce_get(); g.qphase(); g.transition_qa(); g.attention(); g.normalize_o()
        g.ophase(); g.tail(); g.finish_with(g.fallback)
        emit(g, out)
```
